```python
import torch

def _softmax(x, axis=-1):
    return torch.softmax(x, dim=axis)
def _gelu(x):
    return torch.nn.functional.gelu(x, approximate="tanh")
def _silu(x):
    return torch.nn.functional.silu(x)
def _sigmoid(x):
    return torch.sigmoid(x)
def _layernorm(x, axis=-1, eps=1e-5):
    m = x.mean(dim=axis, keepdim=True)
    v = x.var(dim=axis, keepdim=True, unbiased=False)
    return (x - m) / torch.sqrt(v + eps)
def _scatter_add(tgt, idx, src, axis=0):
    return tgt.clone().index_add_(axis, idx, src)
def _segment_sum(src, seg, n):
    out = torch.zeros((n,) + src.shape[1:], dtype=src.dtype)
    return out.index_add_(0, seg, src)
def _pad(x, pw):
    flat = tuple(v for pair in reversed(pw) for v in pair)
    return torch.nn.functional.pad(x, flat)

kernel_name = 'standalone__window_attn_swin_v2__vision'

def setup_inputs():

    _w = (lambda a: (lambda t: t.to(torch.bfloat16) if t.is_floating_point() else t)(torch.as_tensor(a)))
    win = 7
    H = W = (512 // win) * win
    C = 192
    nh = 4
    shift = win // 2
    coords = torch.stack(torch.meshgrid(torch.arange(win), torch.arange(win), indexing="ij"), -1).reshape(-1, 2)
    rel = coords[:, None, :] - coords[None, :, :]
    rel_idx = ((rel[..., 0] + win - 1) * (2 * win - 1) + (rel[..., 1] + win - 1)).to(torch.int64)
    tab = torch.stack(torch.meshgrid(torch.arange(1 - win, win), torch.arange(1 - win, win), indexing="ij"), -1).reshape(-1, 2).to(float)
    tab = (lambda _x: torch.sign(torch.as_tensor(_x)))(tab) * (lambda _x: torch.log1p(torch.as_tensor(_x)))(torch.abs(tab))
    img = torch.zeros((H, W), dtype=torch.int64)
    cnt = 0
    for hs in (slice(0, H - win), slice(H - win, H - shift), slice(H - shift, H)):
        for ws in (slice(0, W - win), slice(W - win, W - shift), slice(W - shift, W)):
            img[hs, ws] = cnt; cnt += 1
    mw = img.reshape(H // win, win, W // win, win).permute(0, 2, 1, 3).reshape(-1, win * win)
    mask = (mw[:, :, None] != mw[:, None, :]).to(float) * (-100.0)
    return {
        "x": _w((lambda *s: torch.randn(*s, dtype=torch.bfloat16) * 0.05)(1, H, W, C)),
        "wqkv": _w((lambda *s: torch.randn(*s, dtype=torch.bfloat16) * 1.6)(C, 3 * C)),
        "wo": _w((lambda *s: torch.randn(*s, dtype=torch.bfloat16) * 0.05)(C, C)),
        "logit_scale": _w((lambda *s: torch.randn(*s, dtype=torch.bfloat16) * 1.6)(nh)),
        "cpb_w1": _w((lambda *s: torch.randn(*s, dtype=torch.bfloat16) * 1.6)(2, 4 * nh)),
        "cpb_w2": _w((lambda *s: torch.randn(*s, dtype=torch.bfloat16) * 1.6)(4 * nh, nh)),
        "rel_coords": _w(tab),
        "rel_idx": _w(rel_idx),
        "attn_mask": _w(mask),
    }

def reference(x, wqkv, wo, logit_scale, cpb_w1, cpb_w2, rel_coords, rel_idx, attn_mask):
    B, H, W, C = x.shape
    win = 7
    nh = 4
    hd = C // nh
    shift = win // 2
    ww = win * win
    nH, nW = H // win, W // win
    xs = torch.roll(x, (-shift, -shift), (1, 2))
    xw = (lambda x, *d: x.permute(*d))(xs.reshape(B, nH, win, nW, win, C), 0, 1, 3, 2, 4, 5).reshape(B * nH * nW, ww, C)
    qkv = (lambda x, *d: x.permute(*d))((xw @ wqkv).reshape(B * nH * nW, ww, 3, nh, hd), 2, 0, 3, 1, 4)
    q, k, v = qkv[0], qkv[1], qkv[2]
    qn = q * (torch.einsum("bhqd,bhqd->bhq", q, q)[..., None] + 1e-12) ** -0.5
    kn = k * (torch.einsum("bhkd,bhkd->bhk", k, k)[..., None] + 1e-12) ** -0.5
    logits = torch.einsum("bhqd,bhkd->bhqk", qn, kn)
    tau = torch.exp(torch.clip(logit_scale, -100.0, 4.6052))
    logits = logits * tau[None, :, None, None]
    hcpb = rel_coords @ cpb_w1
    hcpb = torch.where(hcpb > 0, hcpb, hcpb * 0)
    bias_tab = 16.0 * _sigmoid(hcpb @ cpb_w2)
    bias = (lambda x, *d: x.permute(*d))(bias_tab[rel_idx], 2, 0, 1)
    logits = logits.reshape(B, nH * nW, nh, ww, ww) + bias[None, None, :, :, :] + attn_mask[None, :, None, :, :]
    p = _softmax(logits.reshape(B * nH * nW, nh, ww, ww), axis=-1)
    o = (lambda x, *d: x.permute(*d))(torch.einsum("bhqk,bhkd->bhqd", p, v), 0, 2, 1, 3).reshape(B * nH * nW, ww, C) @ wo
    o = (lambda x, *d: x.permute(*d))(o.reshape(B, nH, nW, win, win, C), 0, 1, 3, 2, 4, 5).reshape(B, H, W, C)
    o = torch.roll(o, (shift, shift), (1, 2))
    return _layernorm(o, axis=-1)
```

```python
import re
import random

TRANS = ("v_exp_f32", "v_rsq_f32", "v_rcp_f32", "v_log_f32", "v_sqrt_f32")
_REG = re.compile(r"^([vas])(\d+)$")
_RNG = re.compile(r"^([vas])\[(\d+):(\d+)\]$")
_VR1 = re.compile(r"^%(\w+)$")
_VR2 = re.compile(r"^%(\w+)\[(\d+)\]$")
_VR3 = re.compile(r"^%(\w+)\[(\d+):(\d+)\]$")
_VSUB = re.compile(r"%(\w+)(?:\[(\d+)(?::(\d+))?\])?")


def parse_operand(tok, vsize):
    tok = tok.strip()
    if tok.startswith("-"):
        tok = tok[1:]
    if tok.startswith("abs(") and tok.endswith(")"):
        tok = tok[4:-1]
    if tok.startswith("|") and tok.endswith("|"):
        tok = tok[1:-1]
    m = _REG.match(tok)
    if m:
        return [(m.group(1), int(m.group(2)))]
    m = _RNG.match(tok)
    if m:
        return [(m.group(1), i) for i in range(int(m.group(2)), int(m.group(3)) + 1)]
    m = _VR1.match(tok)
    if m:
        return [("%" + m.group(1), i) for i in range(vsize[m.group(1)])]
    m = _VR2.match(tok)
    if m:
        assert int(m.group(2)) < vsize[m.group(1)], tok
        return [("%" + m.group(1), int(m.group(2)))]
    m = _VR3.match(tok)
    if m:
        assert int(m.group(3)) < vsize[m.group(1)], tok
        return [("%" + m.group(1), i) for i in range(int(m.group(2)), int(m.group(3)) + 1)]
    if tok in ("vcc", "exec", "m0", "scc"):
        return [(tok, 0)]
    return []


def split_ops(s):
    out, depth, cur = [], 0, ""
    for ch in s:
        if ch == "[":
            depth += 1
        elif ch == "]":
            depth -= 1
        if ch == "," and depth == 0:
            out.append(cur)
            cur = ""
        else:
            cur += ch
    if cur.strip():
        out.append(cur)
    return [o.strip() for o in out]


class Ins:
    def __init__(self, text, vsize=None, name=None, stage=0, deps=(), pub=(), need=(), chain=None, **kw):
        self.text = text.strip()
        self.name = name
        self.stage = stage
        self.deps = list(deps)
        self.pub = list(pub)
        self.need = list(need)
        self.chain = chain
        self.attr = kw
        self.parse(vsize or {})

    def clone_with_text(self, text):
        n = Ins(text, None, self.name, self.stage, self.deps, self.pub, self.need, self.chain, **self.attr)
        return n

    def parse(self, vsize):
        t = self.text
        self.defs, self.uses, self.srcC, self.data = [], [], [], []
        self.dpp = self.perm = False
        self.slots = 1
        if t.endswith(":") or t.startswith("."):
            self.mn, self.kind, self.slots = t, "label", 0
            return
        parts = t.split(None, 1)
        mn = self.mn = parts[0]
        rest = parts[1] if len(parts) > 1 else ""
        ops = split_ops(rest)
        mods = ""
        if ops:
            last = ops[-1].split(None, 1)
            ops[-1] = last[0]
            mods = last[1] if len(last) > 1 else ""
        R = [parse_operand(o, vsize) for o in ops]
        flat = lambda xs: [r for x in xs for r in x]
        if mn.startswith("v_mfma"):
            self.kind, self.slots = "mfma", 2
            self.defs, self.srcC = R[0], R[3]
            self.uses = R[1] + R[2] + R[3]
            self.ab = R[1] + R[2]
        elif mn.startswith("ds_read"):
            self.kind = "dsr"
            self.defs, self.uses = R[0], R[1]
        elif mn.startswith("ds_write"):
            self.kind = "dsw"
            self.uses = flat(R)
            self.slots = len(self.uses)
        elif mn.startswith("ds_bpermute") or mn.startswith("ds_swizzle"):
            self.kind = "dsr"
            self.defs, self.uses = R[0], flat(R[1:])
            self.slots = len(self.uses)
        elif mn.startswith("buffer_load"):
            if re.search(r"\blds\b", mods):
                self.kind = "dma"
                self.uses = flat(R) + [("m0", 0)]
            else:
                self.kind = "vld"
                self.defs, self.uses = R[0], flat(R[1:])
        elif mn.startswith("global_load"):
            self.kind = "vld"
            self.defs, self.uses = R[0], flat(R[1:])
        elif mn.startswith("buffer_store"):
            self.kind = "vst"
            self.uses, self.data = flat(R), R[0]
        elif mn.startswith("global_store"):
            self.kind = "vst"
            self.uses, self.data = flat(R), R[1]
        elif mn.startswith("v_"):
            self.kind = "valu"
            base = re.sub(r"_(e32|e64|dpp|sdwa)$", "", mn)
            self.trans = base in TRANS
            self.dpp = mn.endswith("_dpp")
            self.perm = mn.startswith("v_permlane")
            if self.trans or self.perm:
                self.slots = 2
            self.defs, self.uses = R[0], flat(R[1:])
            if self.perm:
                self.defs = R[0] + R[1]
                self.uses = R[0] + R[1]
            if base.startswith("v_fmac") or base.startswith("v_pk_fmac") or base == "v_writelane_b32":
                self.uses = self.uses + R[0]
            if self.dpp and ("row_mask:0xf" not in mods or "bank_mask:0xf" not in mods):
                self.uses = self.uses + R[0]
            if base in ("v_add_co_u32", "v_addc_co_u32"):
                self.defs = R[0] + R[1]
                self.uses = flat(R[2:])
        elif mn == "s_waitcnt":
            self.kind = "wait"
        elif mn == "s_nop":
            self.kind = "nop"
            self.slots = int(ops[0]) + 1
        elif mn == "s_barrier":
            self.kind = "barrier"
        elif mn.startswith("s_cbranch") or mn in ("s_branch", "s_endpgm"):
            self.kind = "branch"
            if "scc" in mn:
                self.uses = [("scc", 0)]
            if "vcc" in mn:
                self.uses = [("vcc", 0)]
        elif mn.startswith("s_load") or mn in ("s_memtime", "s_memrealtime"):
            self.kind = "smem"
            self.defs, self.uses = R[0], flat(R[1:])
        elif mn.startswith("s_"):
            self.kind = "salu"
            if mn.startswith("s_cmp") or mn.startswith("s_bitcmp"):
                self.defs, self.uses = [("scc", 0)], flat(R)
            elif mn in ("s_setprio", "s_sleep"):
                pass
            else:
                self.defs, self.uses = R[0], flat(R[1:])
                if not (mn.startswith("s_mov") or mn.startswith("s_cselect") or mn.startswith("s_mul") or mn.startswith("s_getpc")):
                    self.defs = self.defs + [("scc", 0)]
                if mn.startswith("s_cselect") or mn in ("s_addc_u32", "s_subb_u32"):
                    self.uses = self.uses + [("scc", 0)]
                if "saveexec" in mn:
                    self.defs = self.defs + [("exec", 0)]
        else:
            raise ValueError("unknown instruction: " + t)
        self.dset, self.uset = set(self.defs), set(self.uses)

    @property
    def states(self):
        return self.slots if self.kind == "nop" else (0 if self.kind == "label" else 1)

    def __repr__(self):
        return f"<{self.name or ''} {self.text}>"


def is_sreg(r):
    return r[0] in ("s", "vcc")


def hazard(p, c):
    if p.kind == "label" or c.kind == "label":
        return 0
    w = 0
    if p.kind == "mfma":
        if c.kind == "mfma":
            if p.dset & set(c.ab):
                w = max(w, 8)
            if p.dset & set(c.srcC) and (p.defs != c.srcC or p.mn != c.mn):
                w = max(w, 6)
        else:
            if p.dset & (c.uset | c.dset):
                w = max(w, 8)
            if set(p.srcC) & c.dset:
                w = max(w, 3)
    elif p.kind == "valu":
        raw = p.dset & c.uset
        vraw = {r for r in raw if not is_sreg(r) and r[0] != "exec"}
        sraw = {r for r in raw if is_sreg(r)}
        if vraw:
            if c.kind == "mfma":
                w = max(w, 2)
            if c.kind == "valu":
                if c.dpp or c.perm:
                    w = max(w, 2)
                if p.trans or c.mn.startswith("v_readfirstlane") or c.mn.startswith("v_readlane"):
                    w = max(w, 1)
                if "op_sel" in p.text or "sdwa" in p.mn:
                    w = max(w, 1)
        if sraw:
            if c.kind == "valu":
                w = max(w, 4 if "lane" in c.mn else 2)
            elif c.kind in ("vld", "vst", "dma"):
                w = max(w, 5)
            else:
                w = max(w, 2)
    elif p.kind == "vst":
        if len(p.data) >= 3 and set(p.data) & c.dset:
            w = max(w, 2)
    elif p.kind == "salu":
        if ("m0", 0) in p.dset and c.kind == "dma":
            w = max(w, 1)
    elif p.kind == "dsr":
        if c.kind == "valu" and (c.dpp or c.perm) and p.dset & c.uset:
            w = max(w, 2)
    return w


def fix_hazards(seq, prefix=()):
    out = list(prefix)
    n0 = len(out)
    for c in seq:
        need, dist = 0, 0
        for p in reversed(out):
            if dist >= 10:
                break
            need = max(need, hazard(p, c) - dist)
            dist += p.states
        if need > 0:
            out.append(Ins(f"s_nop {need - 1}"))
        out.append(c)
    return out[n0:]


def check_hazards(seq):
    bad = []
    for i, c in enumerate(seq):
        dist = 0
        for j in range(i - 1, -1, -1):
            if dist >= 10:
                break
            if hazard(seq[j], c) > dist:
                bad.append((seq[j], c, dist))
            dist += seq[j].states
    return bad


LG = ("dsr", "dsw")
VM = ("vld", "vst", "dma")


class WaitState:
    def __init__(self):
        self.q = {"lg": [], "vm": []}

    def copy(self):
        n = WaitState()
        n.q = {k: list(v) for k, v in self.q.items()}
        return n


def insert_waits(blocks, paths, hoist=True):
    waits = {b: {} for b in blocks}
    MAXC = {"lg": 15, "vm": 63}

    def run(path):
        changed = False
        q = {"lg": [], "vm": []}
        serial = 0
        for b in path:
            seq = blocks[b]
            issued_at = {}
            for i, c in enumerate(seq):
                for k, n in waits[b].get(i, {}).items():
                    q[k] = q[k][len(q[k]) - n:] if 0 < n < len(q[k]) else ([] if n == 0 else q[k])
                if c.kind == "wait":
                    for k, pat in (("lg", r"lgkmcnt\((\d+)\)"), ("vm", r"vmcnt\((\d+)\)")):
                        m = re.search(pat, c.text)
                        if m:
                            n = int(m.group(1))
                            q[k] = q[k][len(q[k]) - n:] if 0 < n < len(q[k]) else ([] if n == 0 else q[k])
                    continue
                if c.kind == "label":
                    continue
                touch = c.uset | c.dset
                for k in ("lg", "vm"):
                    tgt = -1
                    for j, (p, sid) in enumerate(q[k]):
                        if (p.dset & touch) or (set(p.pub) & set(c.need)):
                            tgt = j
                    if tgt >= 0:
                        pos = i
                        if hoist:
                            j = i - 1
                            if c.kind == "barrier" and j >= 0 and seq[j].kind == "mfma":
                                j -= 1
                            while j >= 0 and seq[j].kind not in ("mfma", "label", "branch"):
                                j -= 1
                            if j >= 0 and seq[j].kind == "mfma" and issued_at.get(q[k][tgt][1], -1) < j and i - j < 12:
                                pos = j + 1
                        n = sum(1 for (p, sid) in q[k][tgt + 1:] if issued_at.get(sid, -1) < pos)
                        n = min(n, MAXC[k])
                        w = waits[b].setdefault(pos, {})
                        if w.get(k, 99) > n:
                            w[k] = n
                            changed = True
                        q[k] = q[k][tgt + 1:]
                k = "lg" if c.kind in LG else "vm" if c.kind in VM else None
                if k:
                    serial += 1
                    q[k].append((c, serial))
                    issued_at[serial] = i
        return changed

    for _ in range(10):
        if not any([run(p) for p in paths]):
            break
    else:
        raise RuntimeError("waits did not converge")
    out = {}
    for b, seq in blocks.items():
        o = []
        for i, c in enumerate(seq):
            w = waits[b].get(i)
            if w:
                t = "s_waitcnt"
                if "vm" in w:
                    t += f" vmcnt({w['vm']})"
                if "lg" in w:
                    t += f" lgkmcnt({w['lg']})"
                o.append(Ins(t))
            o.append(c)
        out[b] = o
    return out


def estimate_cycles(seq):
    t, mf_free, prev, vec_free = 0, 0, None, 0
    for c in seq:
        if c.kind == "label":
            continue
        if c.kind == "mfma":
            t = max(t, mf_free, vec_free)
            mf_free, vec_free = t + 16, t + 8
            t += 4
        elif c.kind in ("valu",) + LG + VM:
            t = max(t, vec_free)
            if c.kind != "valu" and prev is not None and prev[0] == "valu":
                t = max(t, prev[1] + 8)
            if c.kind == "vst":
                mf_free = max(mf_free, t + 4 + 4 * len(c.data))
            t += 4 * c.slots
            if c.kind == "valu":
                prev = ("valu", t)
        else:
            t += 4 * c.slots
        if c.kind in ("mfma",) + LG + VM:
            prev = None
    return t


class Inst:
    __slots__ = ("op", "it", "li", "preds", "idx", "t", "mpos", "nsucc", "prod")


def schedule(prog, niter, lds_lat=140, look_m=24, look_d=14, look_v=60, verbose=False):
    byname = {o.name: i for i, o in enumerate(prog)}
    assert len(byname) == len(prog), "duplicate op names"
    insts = []
    lastw, readers = {}, {}
    mcount = 0
    for it in range(niter):
        for li, o in enumerate(prog):
            x = Inst()
            x.op, x.it, x.li, x.idx, x.t = o, it, len(insts), None, None
            x.mpos = mcount
            if o.kind == "mfma":
                mcount += 1
            preds = {}
            x.prod = {}
            for r in o.uses:
                if r in lastw:
                    preds[lastw[r].li] = lastw[r]
                    x.prod[r] = lastw[r]
            for r in o.defs:
                if r in lastw:
                    preds[lastw[r].li] = lastw[r]
                for y in readers.get(r, ()):
                    preds[y.li] = y
            for (nm, d) in o.deps:
                j = (it + d) * len(prog) + byname[nm]
                if it + d >= 0:
                    assert j < len(insts), f"dep of {o.name} on later op {nm}"
                    preds[j] = insts[j]
            preds.pop(x.li, None)
            x.preds = list(preds.values())
            for r in o.uses:
                readers.setdefault(r, []).append(x)
            for r in o.defs:
                lastw[r] = x
                readers[r] = []
            insts.append(x)
    out = []
    pending = list(insts)
    state = dict(t=0, mf_free=0, vec_free=0, lastvalu=None, n=0, chain=None, free=False)

    def ready(x, t):
        for p in x.preds:
            if p.idx is None:
                return False
            if state["n"] - p.idx - 1 < hazard(p.op, x.op):
                return False
            if p.op.kind == "dsr" and (p.op.dset & (x.op.uset | x.op.dset) or set(p.op.pub) & set(x.op.need)) and t < p.t + lds_lat:
                return False
            if p.op.kind == "dsw" and set(p.op.pub) & set(x.op.need) and t < p.t + lds_lat:
                return False
            if p.op.kind == "salu" and x.op.kind != "salu" and t < p.t + 12:
                return False
        return True

    def emit(x, t):
        x.idx, x.t = state["n"], t
        if x.op.kind not in ("salu", "barrier"):
            state["n"] += 1
        else:
            x.idx = state["n"] - 1
        out.append(x)
        pending.remove(x)

    stall = 0
    while pending:
        t = state["t"]
        win = pending[:400]
        first_m = next((x.mpos for x in win if x.op.kind == "mfma"), 10 ** 9)
        first_o = next((x.mpos for x in win if x.op.kind != "mfma" and not x.op.attr.get("lazy")), 10 ** 9)
        if state["free"]:
            state["free"] = False
            x = next((x for x in win if x.op.kind in ("salu", "barrier") and x.mpos <= first_m + look_v and ready(x, t)), None)
            if x is not None:
                emit(x, t)
            state["t"] = state["vec_free"]
            continue
        if t >= state["mf_free"]:
            cand = None
            for x in win:
                if x.op.kind != "mfma":
                    continue
                if state["chain"] is not None:
                    if (x.op.chain, x.it) == state["chain"]:
                        cand = x if ready(x, t) else None
                        break
                    continue
                if x.mpos > first_o + x.op.attr.get("look", look_m):
                    continue
                if ready(x, t) and all(ready_chain(y, x, t, ready, state) for y in win if y.op.kind == "mfma" and y.op.chain is not None and (y.op.chain, y.it) == (x.op.chain, x.it)):
                    cand = x
                    break
            if cand is not None:
                emit(cand, t)
                rest = [y for y in win if y is not cand and y.op.kind == "mfma" and cand.op.chain is not None and (y.op.chain, y.it) == (cand.op.chain, cand.it)]
                state["chain"] = (cand.op.chain, cand.it) if rest else None
                state.update(mf_free=t + 16, vec_free=t + 8, t=t + 4, lastvalu=None, free=True)
                continue
        mem_ok = state["lastvalu"] is None or t >= state["lastvalu"] + 8
        cand = None
        if mem_ok:
            cand = next((x for x in win if x.op.kind in LG + VM and x.mpos <= first_m + x.op.attr.get("look", look_d) and ready(x, t)), None)
        if cand is None:
            room = state["mf_free"] - t
            vs = [x for x in win if x.op.kind == "valu" and x.mpos <= first_m + x.op.attr.get("look", look_v) and ready(x, t)]
            if vs:
                cand = vs[0]
        if cand is not None:
            emit(cand, t)
            if cand.op.kind == "vst":
                state["mf_free"] = max(state["mf_free"], t + 4 + 4 * len(cand.op.data))
            state["t"] = t + 4 * cand.op.slots
            state["lastvalu"] = state["t"] if cand.op.kind == "valu" else None
            continue
        x = next((x for x in win if x.op.kind in ("salu", "barrier") and x.mpos <= first_m + look_v and ready(x, t)), None)
        if x is not None and t >= state["mf_free"]:
            emit(x, t)
            state["t"] = t + 4
            continue
        if t >= state["mf_free"]:
            nop = Inst()
            nop.op, nop.it, nop.li, nop.preds, nop.prod = Ins("s_nop 0", name="_nop"), -1, -1, [], {}
            nop.idx, nop.t = state["n"], t
            state["n"] += 1
            out.append(nop)
            stall += 1
            if stall > 100000:
                raise RuntimeError("scheduler deadlock near " + repr(pending[:5] and [p.op for p in pending[:5]]))
        state["t"] = t + 4
    return out


def ready_chain(y, head, t, ready, state):
    if y is head:
        return True
    for p in y.preds:
        if p.idx is None and not (p.op.kind == "mfma" and (p.op.chain, p.it) == (y.op.chain, y.it)):
            if p.op.kind == "dsr":
                continue
            return False
    return True


def extract_period(sched, anchor, it):
    def cut(i):
        a = next(k for k, x in enumerate(sched) if x.op.name == anchor and x.it == i)
        b = next(k for k, x in enumerate(sched) if x.op.name == anchor and x.it == i + 1)
        return [(x.op, 0 if x.it < 0 else i - x.it) for x in sched[a:b]], sched[b].t - sched[a].t
    b1, c1 = cut(it)
    b2, c2 = cut(it + 1)
    same = [(o.name, s) for o, s in b1] == [(o.name, s) for o, s in b2]
    return b1, c1, same


def live_masks(ops, vsize, cyclic, persistent=()):
    n = len(ops)
    full = (1 << n) - 1
    acc = {}
    for i, o in enumerate(ops):
        for r in o.uses:
            if r[0].startswith("%"):
                acc.setdefault(r, []).append((i, 0, o))
        for r in o.defs:
            if r[0].startswith("%"):
                acc.setdefault(r, []).append((i, 1, o))
    masks = {}

    def span(a, b):
        if b - a + 1 >= n:
            return full
        m = 0
        for k in range(a, b + 1):
            if cyclic:
                m |= 1 << (k % n)
            elif k < n:
                m |= 1 << k
        return m

    for r, lst in acc.items():
        if r[0][1:] in persistent or not any(d for _, d, _ in lst):
            masks[r] = full
            continue
        m = 0
        seq = lst + ([(i + n, d, o) for i, d, o in lst] if cyclic else [])
        lastdef = None if cyclic else -1
        for (i, d, o) in seq:
            if d:
                lastdef = i
                m |= span(i, i + (9 if o.kind == "mfma" else 0))
            elif lastdef is not None:
                extra = 3 if (o.kind == "mfma" and r in o.srcC) else 2 if (o.kind == "vst" and r in o.data) else 0
                end = i + extra if extra or o.kind == "mfma" else i - 1
                if end >= lastdef:
                    m |= span(max(lastdef, 0), end)
        masks[r] = m
    for o_i, o in enumerate(ops):
        if o.kind in ("dsr", "vld") and len(o.defs) > 1 and o.defs[0][0].startswith("%"):
            first = None
            for k in range(1, n):
                p = ops[(o_i + k) % n] if cyclic else (ops[o_i + k] if o_i + k < n else None)
                if p is None:
                    break
                if p.kind != "label" and (p.uset | p.dset) & o.dset:
                    first = o_i + k
                    break
            if first is not None:
                for r in o.defs:
                    masks[r] |= span(o_i, first)
    return masks


def allocate(ops, vsize, pool, cyclic, persistent=(), fixed=None, tries=400, seed=0):
    masks = live_masks(ops, vsize, cyclic, persistent)
    names = sorted({r[0][1:] for r in masks})
    el = {nm: [masks.get(("%" + nm, i), 0) for i in range(vsize[nm])] for nm in names}
    n = len(ops)
    press = [sum((m >> k) & 1 for m in masks.values()) for k in range(n)]
    poolset = set(pool)
    rnd = random.Random(seed)
    weight = {nm: sum(bin(m).count("1") for m in el[nm]) for nm in names}
    for tr in range(tries):
        occ = {p: 0 for p in pool}
        res = {}
        for nm, b in (fixed or {}).items():
            if nm in el:
                res[nm] = b
                for i, m in enumerate(el[nm]):
                    if b + i in occ:
                        occ[b + i] |= m
        if tr == 0:
            order = sorted(names, key=lambda a: -weight[a])
        elif tr == 1:
            order = sorted(names, key=lambda a: (-vsize[a], -weight[a]))
        else:
            order = sorted(names, key=lambda a: -weight[a] * rnd.uniform(0.5, 1.5) * (1 + 0.2 * vsize[a]))
        ok = True
        for nm in order:
            if nm in res:
                continue
            k = vsize[nm]
            best = None
            for b in pool:
                if k > 1 and b % 2:
                    continue
                if all((b + i) in poolset and not (occ[b + i] & el[nm][i]) for i in range(k)):
                    best = b
                    break
            if best is None:
                ok = False
                break
            res[nm] = best
            for i in range(k):
                occ[best + i] |= el[nm][i]
        if ok:
            return res, max(press)
    raise RuntimeError(f"register allocation failed: max pressure {max(press)} at {press.index(max(press))}/{n}, pool {len(pool)}")


def substitute(text, alloc, vsize):
    def f(m):
        nm, a, b = m.group(1), m.group(2), m.group(3)
        base = alloc[nm]
        if a is None:
            lo, hi = base, base + vsize[nm] - 1
        elif b is None:
            lo = hi = base + int(a)
        else:
            lo, hi = base + int(a), base + int(b)
        return f"v{lo}" if lo == hi else f"v[{lo}:{hi}]"
    return _VSUB.sub(f, text)


def check_dataflow(sched, alloc):
    cur = {}
    errs = 0
    for x in sched:
        if x.li < 0:
            continue
        for r in x.op.uses:
            if r[0].startswith("%") and r in x.prod:
                ph = alloc[r[0][1:]] + r[1]
                if cur.get(ph) != (x.prod[r].li, r):
                    errs += 1
        for r in x.op.defs:
            if r[0].startswith("%"):
                cur[alloc[r[0][1:]] + r[1]] = (x.li, r)
    return errs
```

```python
from asmlib import Ins

RING = 20480
L_BIAS = 4 * RING
L_E = L_BIAS + 36864
E_REC = 320
L_LN = L_E + 4 * 32 * E_REC
LDS_BYTES = L_LN + 2048

S_X, S_OUT = 24, 28
S_TAU, S_EPSQ, S_EPSL, S_SQ = 40, 41, 42, 43
S_B = 44
S_D = 48
S_T = 53
S_WOFF = 54
S_SO = 56
S_CNT, S_STA, S_STB, S_REM, S_IT, S_N = 61, 62, 63, 64, 65, 66
S_DM = 67
NBYTES = 100270464


def wq(j, s): return 4 * (6 * j + s)
def areg(b): return f"a[{b}:{b + 3}]"
def WQ(j, s): return areg(wq(j, s))
def WK(j, s): return areg(72 + wq(j, s))
def WV(j, s): return areg(144 + wq(j, s))
def WO(j, s):
    k = 6 * j + s
    return areg(216 + 4 * k) if k < 10 else f"v[{224 + 4 * (k - 10)}:{224 + 4 * (k - 10) + 3}]"


PERSIST = dict(ONES=4, SEL=4, BT=4, aF0=1, aF1=1, aW1=1, aW2=1, aL=1, aB=1, aE1=1, aE2=1, aNw=1, aNr=1,
               g0=1, g1=1, g2=1, g3=1, g4=1)


class Prog:
    def __init__(self):
        self.vs = dict(PERSIST)
        self.ops = []
        self.stage = 0
        self.auto = 0

    def v(self, name, size):
        if name in self.vs:
            assert self.vs[name] == size
        self.vs[name] = size
        return "%" + name

    def __call__(self, text, name=None, **kw):
        if name is None:
            self.auto += 1
            name = f"i{self.auto}"
        kw.setdefault("stage", self.stage)
        o = Ins(text, self.vs, name=name, **kw)
        if kw.get("as_salu"):
            o.kind = "salu"
        self.ops.append(o)
        return name


M32 = "v_mfma_f32_16x16x32_bf16"
M16 = "v_mfma_f32_16x16x16_bf16"


def frag_reads(P, pre, t, **kw):
    names = []
    for s in range(6):
        x = P.v(f"{pre}{t}{s}", 4)
        names.append(P(f"ds_read_b128 {x}, %aF{s & 1} offset:{1536 * t + 128 * (s >> 1)}", name=f"rd{pre}{t}{s}", **kw))
    return names


def chain(P, acc, W, j, xpre, t, swap=False, **kw):
    a = P.v(acc, 4)
    for s in range(6):
        x = f"%{xpre}{t}{s}"
        A, B = (x, W(j, s)) if swap else (W(j, s), x)
        P(f"{M32} {a}, {A}, {B}, {'0' if s == 0 else a}", name=f"m{acc}{s}", chain=acc, **kw)


def sumsq(P, dst, acc, first, eps):
    d = P.v(dst, 1)
    for r in range(4):
        if first and r == 0:
            P(f"v_fma_f32 {d}, %{acc}[0], %{acc}[0], s{eps}")
        else:
            P(f"v_fmac_f32 {d}, %{acc}[{r}], %{acc}[{r}]")


def scale_pack(P, acc, rs, dst, off):
    for k in range(2):
        P(f"v_mul_f32 %{acc}[{2 * k}], %{acc}[{2 * k}], {rs}")
        P(f"v_mul_f32 %{acc}[{2 * k + 1}], %{acc}[{2 * k + 1}], {rs}")
        P(f"v_cvt_pk_bf16_f32 {dst}[{off + k}], %{acc}[{2 * k}], %{acc}[{2 * k + 1}]")


def pack(P, acc, dst, off):
    for k in range(2):
        P(f"v_cvt_pk_bf16_f32 {dst}[{off + k}], %{acc}[{2 * k}], %{acc}[{2 * k + 1}]")


def qk_chains(P, t, hook=None):
    for nm, W in (("Q", WQ), ("K", WK)):
        for j in range(3):
            chain(P, f"A{nm}{t}{j}", W, j, "X", t)
            if hook:
                hook(nm, j)
            sumsq(P, f"ss{nm}{t}", f"A{nm}{t}{j}", j == 0, S_EPSQ)


def norm_reduce(P, t, nb):
    P(f"v_cvt_pk_bf16_f32 {nb}[2], %ssQ{t}, %ssK{t}")
    d = P.v(f"NR{t}", 4)
    P(f"{M16} {d}, %SEL[0:1], {nb}[2:3], 0", name=f"mNR{t}")
    P(f"v_rsq_f32 {d}[0], {d}[0]")
    P(f"v_rsq_f32 {d}[1], {d}[1]")
    P(f"v_mul_f32 {d}[0], s{S_TAU}, {d}[0]")


def tile_write(P, lo, hi, t, nm, **kw):
    return [P(f"ds_write_b128 %aW1, {lo} offset:{1536 * t}", name=f"{nm}a", **kw),
            P(f"ds_write_b64 %aW2, {hi} offset:{1536 * t}", name=f"{nm}b", **kw)]


def xgroup_max(P, m, tmp):
    for sw in ("v_permlane32_swap_b32", "v_permlane16_swap_b32"):
        P(f"v_mov_b32 {tmp}, {m}")
        P(f"{sw} {tmp}, {m}")
        P(f"v_max_f32 {m}, {tmp}, {m}")


def loop_program(safe_max=False, opt=None):
    opt = opt or {}
    P = Prog()
    ALW = -9
    P.v("P2", 4)
    for j in range(3):
        P.v(f"V1{j}", 4)
        P.v(f"V2{j}", 4)
    for t in range(3):
        for j in range(3):
            P.v(f"Y{t}{j}", 4)
    stateful = []

    def S(text, **kw):
        n = P(text, stage=ALW, **kw)
        stateful.append(n)
        return n

    vm_names = [f"dma{j}" for j in range(5)] + [f"st{j}" for j in range(5)]
    ofr = [f"rdOF{t}{s}" for t in range(3) for s in range(6)]
    owr = [f"wO{t}{k}" for t in range(3) for k in "ab"]

    S(f"s_mov_b32 s{S_T}, s{S_B + 3}")
    S(f"s_mov_b32 s{S_B + 3}, s{S_B + 2}")
    S(f"s_mov_b32 s{S_B + 2}, s{S_B + 1}")
    S(f"s_mov_b32 s{S_B + 1}, s{S_B}")
    S(f"s_mov_b32 s{S_B}, s{S_T}")
    S(f"s_sub_u32 s{S_D}, s{S_B}, s{S_B + 2}")
    S(f"v_add_u32 %aF0, s{S_D}, %aF0")
    S(f"v_add_u32 %aF1, s{S_D}, %aF1")
    P("s_waitcnt vmcnt(10)", name="wB3", stage=ALW, as_salu=True, deps=[(n, -1) for n in vm_names])
    P("s_barrier", name="B3", stage=ALW, deps=[("wB3", 0)])

    xr = []
    ywr = []

    def l_part1():
        P.stage = -2
        for t in range(3):
            for j in range(3):
                sumsq(P, f"ssY{t}", f"Y{t}{j}", j == 0, S_EPSL)
        lp = P.v("LP", 2)
        P(f"v_cvt_pk_bf16_f32 {lp}[0], %ssY0, %ssY1")
        P(f"v_cvt_pk_bf16_f32 {lp}[1], %ssY2, %ssY2")
        P(f"ds_write_b64 %aNw, {lp}", name="wLN", pub=["b1"], deps=[("B2", -1)])
        P("s_barrier", name="B1", stage=ALW, need=["b1"], deps=[("wLN", 0), ("B3", 0)] + [(n, -1) for n in ofr + owr])
        S(f"s_sub_u32 s{S_D + 1}, s{S_B + 2}, s{S_B + 1}")
        S(f"v_add_u32 %aW1, s{S_D + 1}, %aW1")
        S(f"v_add_u32 %aW2, s{S_D + 1}, %aW2")
        for k in range(2):
            P(f"ds_read_b128 {P.v(f'LR{k}', 4)}, %aNr offset:{1024 * k}", name=f"rdLN{k}", deps=[("B1", 0)], pub=["b2"])
        P.stage = 0

    def l_part2():
        P.stage = -2
        d = P.v("LD", 4)
        P(f"{M32} {d}, %SEL, %LR0, 0", name="mLN0", chain="LN")
        P(f"{M32} {d}, %SEL, %LR1, {d}", name="mLN1", chain="LN")
        for t in range(3):
            P(f"v_rsq_f32 {d}[{t}], {d}[{t}]")
        for t in range(3):
            P(f"v_mul_f32 {d}[{t}], s{S_SQ}, {d}[{t}]")
        P.stage = 0

    def l_final(t):
        P.stage = -2
        lo, hi = P.v(f"Ylo{t}", 4), P.v(f"Yhi{t}", 2)
        scale_pack(P, f"Y{t}0", f"%LD[{t}]", lo, 0)
        scale_pack(P, f"Y{t}1", f"%LD[{t}]", lo, 2)
        scale_pack(P, f"Y{t}2", f"%LD[{t}]", hi, 0)
        ywr.extend(tile_write(P, lo, hi, t, f"wY{t}", pub=["b2"]))
        P.stage = 0

    hooks = {(0, "Q", 0): l_part1, (0, "K", 2): l_part2,
             (1, "Q", 0): lambda: l_final(0), (1, "K", 0): lambda: l_final(1), (2, "Q", 0): lambda: l_final(2)}
    hooks.update(opt.get("hooks", {}))

    for t in range(3):
        xr += frag_reads(P, "X", t, deps=[("B3", 0)], pub=["b2"])
        qk_chains(P, t, lambda nm, j: hooks.get((t, nm, j), lambda: None)())
        vdst = (lambda j: (f"%V1{j}", 2 * t)) if t < 2 else (lambda j: (f"%V2{j}", 0))
        chain(P, f"AV{t}0", WV, 0, "X", t, swap=True)
        norm_reduce(P, t, "%P2")
        qlo, qhi, klo, khi = P.v(f"Qlo{t}", 4), P.v(f"Qhi{t}", 2), P.v(f"Klo{t}", 4), P.v(f"Khi{t}", 2)
        pack(P, f"AV{t}0", *vdst(0))
        chain(P, f"AV{t}1", WV, 1, "X", t, swap=True)
        pack(P, f"AV{t}1", *vdst(1))
        chain(P, f"AV{t}2", WV, 2, "X", t, swap=True)
        order = ("K", "Q") if t == 2 else ("Q", "K")
        for nm in order:
            lo, hi, rs = (qlo, qhi, f"%NR{t}[0]") if nm == "Q" else (klo, khi, f"%NR{t}[1]")
            scale_pack(P, f"A{nm}{t}0", rs, lo, 0)
            scale_pack(P, f"A{nm}{t}1", rs, lo, 2)
            scale_pack(P, f"A{nm}{t}2", rs, hi, 0)
        pack(P, f"AV{t}2", *vdst(2))

    P("s_barrier", name="B2", stage=ALW, need=["b2"], deps=[(n, 0) for n in xr + ywr + ["rdLN0", "rdLN1", "B1"]])
    S(f"s_sub_u32 s{S_D + 2}, s{S_B + 1}, s{S_B}")
    S(f"v_add_u32 %aF0, s{S_D + 2}, %aF0")
    S(f"v_add_u32 %aF1, s{S_D + 2}, %aF1")
    S(f"v_add_u32 %aW1, s{S_D}, %aW1")
    S(f"v_add_u32 %aW2, s{S_D}, %aW2")
    S(f"s_sub_u32 s{S_D + 3}, s{S_B + 2}, s{S_B + 3}")
    S(f"v_add_u32 %aL, s{S_D + 3}, %aL")
    S(f"v_add_u32 %aE1, {E_REC}, %aE1")
    S(f"v_add_u32 %aE2, {E_REC}, %aE2")
    for k in (4, 3, 2, 1):
        S(f"s_mov_b32 s{S_SO + k}, s{S_SO + k - 1}")
    S(f"s_add_u32 s{S_SO}, s{S_SO}, s{S_STA}")
    S(f"s_add_u32 s{S_CNT}, s{S_CNT}, 1")
    S(f"s_cmp_eq_u32 s{S_CNT}, 72")
    S(f"s_cselect_b32 s{S_T}, s{S_STB}, 0")
    S(f"s_cselect_b32 s{S_CNT}, 0, s{S_CNT}")
    S(f"s_add_u32 s{S_SO}, s{S_SO}, s{S_T}")
    S(f"s_sub_u32 s{S_REM}, s{S_REM}, 1")
    S(f"s_cmp_gt_i32 s{S_REM}, 0")
    S(f"s_cselect_b32 s{S_X + 2}, {NBYTES}, 0")
    S(f"s_cselect_b32 s{S_SO}, s{S_SO}, 0")
    S(f"s_add_u32 s{S_IT}, s{S_IT}, 1")
    S(f"s_cmp_ge_i32 s{S_IT}, 2")
    S(f"s_cselect_b32 s{S_OUT + 2}, {NBYTES}, 0")
    S(f"s_add_u32 s{S_DM}, s{S_B + 2}, s{S_WOFF}")

    def r_reads(t):
        P.stage = -1
        frag_reads(P, "OF", t, deps=[("B1", 0)], pub=["b1"])
        P.stage = 0

    def r_chain(t, j):
        P.stage = -1
        chain(P, f"Y{t}{j}", WO, j, "OF", t)
        P.stage = 0

    def out_piece(j):
        z = P.v(f"Z{j}", 4)
        P(f"ds_read_b128 {z}, %aL offset:{1024 * j}", name=f"rb{j}", stage=-2, deps=[("B2", 0)], pub=[f"rb{j}"])
        S(f"s_add_u32 m0, s{S_DM}, {1024 * j}")
        prev = [(f"st{j - 1}", 0)] if j else []
        stateful.append(P(f"buffer_load_dwordx4 %g{j}, s[{S_X}:{S_X + 3}], s{S_SO} offen nt lds", name=f"dma{j}", stage=2,
                          need=[f"rb{j}"], deps=[(f"rb{j}", 0)] + prev))
        stateful.append(P(f"buffer_store_dwordx4 {z}, %g{j}, s[{S_OUT}:{S_OUT + 3}], s{S_SO + 4} offen {opt.get('stflag', 'sc1')}",
                          name=f"st{j}", stage=-2, deps=[(f"dma{j}", 0)]))

    def e_reads():
        P(f"ds_read_b128 {P.v('EK', 4)}, %aE1 offset:16", name="rdEK")
        P(f"ds_read_b128 {P.v('EH', 4)}, %aE1 offset:32", name="rdEH")
        P(f"ds_read_b128 {P.v('EQ', 4)}, %aE1", name="rdEQ")

    def ev_reads():
        for j in range(3):
            P(f"ds_read_u16 %V2{j}[2], %aE2 offset:{48 + 8 * j}", name=f"rdEV{j}")

    def s_tiles(q):
        for k in range(3):
            s = P.v(f"S{q}{k}", 4)
            P(f"ds_read_b128 {s}, %aB offset:{1024 * (3 * q + k)}", name=f"rdB{q}{k}")
            P(f"{M32} {s}, %Klo{k}, %Qlo{q}, {s}", name=f"mS{q}{k}a")
        se = P.v(f"SE{q}", 4)
        P(f"{M32} {se}, %EK, %Qlo{q}, %BT", name=f"mSE{q}a")
        for k in range(3):
            P(f"{M16} %S{q}{k}, %Khi{k}, %Qhi{q}, %S{q}{k}", name=f"mS{q}{k}b")
        P(f"{M16} {se}, %EH[2:3], %Qhi{q}, {se}", name=f"mSE{q}b")

    def softmax(q):
        p1 = P.v(f"P1{q}", 4)
        regs = [f"%S{q}{k}[{r}]" for k in range(3) for r in range(4)] + [f"%SE{q}[{q}]"]
        if safe_max:
            m, tmp = P.v(f"mx{q}", 1), P.v(f"mt{q}", 1)
            P(f"v_max3_f32 {m}, {regs[0]}, {regs[1]}, {regs[2]}")
            for k in range(3, 13, 2):
                P(f"v_max3_f32 {m}, {m}, {regs[k]}, {regs[k + 1]}")
            xgroup_max(P, m, tmp)
            for r in regs:
                P(f"v_sub_f32 {r}, {r}, {m}")
        for k in range(3):
            for r in range(4):
                P(f"v_exp_f32 %S{q}{k}[{r}], %S{q}{k}[{r}]")
            pack(P, f"S{q}{k}", p1 if k < 2 else "%P2", 2 * k if k < 2 else 0)
        P(f"v_exp_f32 {regs[12]}, {regs[12]}")
        P(f"v_cvt_pk_bf16_f32 %P2[2], {regs[12]}, 0")

    def pv(q):
        sm = P.v(f"SM{q}", 4)
        P(f"{M32} {sm}, %ONES, %P1{q}, 0", name=f"mSM{q}a", chain=f"SM{q}")
        P(f"{M32} {sm}, %ONES, %P2, {sm}", name=f"mSM{q}b", chain=f"SM{q}")
        for j in range(3):
            o = P.v(f"O{q}{j}", 4)
            P(f"{M32} {o}, %V1{j}, %P1{q}, 0", name=f"mO{q}{j}a", chain=f"O{q}{j}")
            P(f"{M32} {o}, %V2{j}, %P2, {o}", name=f"mO{q}{j}b", chain=f"O{q}{j}")

    def o_out(q):
        P(f"v_rcp_f32 %SM{q}[0], %SM{q}[0]")
        lo, hi = P.v(f"Olo{q}", 4), P.v(f"Ohi{q}", 2)
        scale_pack(P, f"O{q}0", f"%SM{q}[0]", lo, 0)
        scale_pack(P, f"O{q}1", f"%SM{q}[0]", lo, 2)
        scale_pack(P, f"O{q}2", f"%SM{q}[0]", hi, 0)
        tile_write(P, lo, hi, q, f"wO{q}", pub=["b1"], deps=[("B2", 0)])

    def eq_logits():
        for k in range(4):
            P(f"{M32} {P.v(f'T{k}', 4)}, %EQ, {f'%Klo{k}' if k < 3 else '%EK'}, %BT", name=f"mT{k}a")
        for k in range(4):
            P(f"{M16} %T{k}, %EH[0:1], {f'%Khi{k}' if k < 3 else '%EH[2:3]'}, %T{k}", name=f"mT{k}b")

    def eq_softmax():
        for k in range(1, 4):
            P(f"v_mov_b32_dpp %T0[3], %T{k}[3] quad_perm:[0,1,2,3] row_mask:0x{1 << k:x} bank_mask:0xf")
        if safe_max:
            m, tmp = P.v("mxE", 1), P.v("mtE", 1)
            P(f"v_mov_b32 {m}, %T0[3]")
            for sh in (8, 4, 2, 1):
                P(f"v_max_f32_dpp {m}, {m}, {m} row_ror:{sh} row_mask:0xf bank_mask:0xf")
            xgroup_max(P, m, tmp)
            P(f"v_sub_f32 %T0[3], %T0[3], {m}")
        P("v_exp_f32 %T0[3], %T0[3]")
        P("v_cvt_pk_bf16_f32 %T0[3], %T0[3], %T0[3]")
        stateful.append(P("ds_write_b16 %aE2, %T0[3]", name="wPE", deps=[("rdEQ", 0), ("rdEK", 0)]))
        P(f"ds_read_b128 {P.v('PE1', 4)}, %aE1", name="rdPE1", deps=[("wPE", 0)], look=99)
        P(f"ds_read_b128 {P.v('PE2', 4)}, %aE1 offset:16", name="rdPE2", deps=[("wPE", 0)], look=99)

    def eq_pv():
        for j in range(4):
            o = P.v(f"U{j}", 4)
            b1, b2 = (f"%V1{j}", f"%V2{j}") if j < 3 else ("%ONES", "%ONES")
            P(f"{M32} {o}, %PE1, {b1}, 0", name=f"mU{j}a", chain=f"U{j}")
            P(f"{M32} {o}, %PE2, {b2}, {o}", name=f"mU{j}b", chain=f"U{j}")

    def eq_out():
        P("v_rcp_f32 %U3[0], %U3[0]")
        for k in range(1, 3):
            P(f"v_mov_b32_dpp %U0[0], %U{k}[0] quad_perm:[0,1,2,3] row_mask:0x{1 << k:x} bank_mask:0xf")
        P("v_mul_f32 %U0[0], %U0[0], %U3[0]")
        P("v_cvt_pk_bf16_f32 %U0[0], %U0[0], %U0[0]")
        stateful.append(P("ds_write_b16 %aE2, %U0[0] offset:48", name="wOE", deps=[(f"rdEV{j}", 0) for j in range(3)]))

    seq = opt.get("aseq") or [
        "rr0", "r00", "r01", "er", "o0", "r02", "s0", "ev", "x0", "eql", "eqs", "o1", "rr1", "r10", "s1", "pv0", "x1",
        "oo0", "o2", "r11", "eqp", "eqo", "r12", "s2", "pv1", "x2", "oo1", "o3", "rr2", "r20", "o4", "r21", "r22", "pv2", "oo2"]
    for a in seq:
        if a.startswith("rr"): r_reads(int(a[2]))
        elif a[0] == "r": r_chain(int(a[1]), int(a[2]))
        elif a == "er": e_reads()
        elif a == "ev": ev_reads()
        elif a == "eql": eq_logits()
        elif a == "eqs": eq_softmax()
        elif a == "eqp": eq_pv()
        elif a == "eqo": eq_out()
        elif a.startswith("oo"): o_out(int(a[2]))
        elif a[0] == "o": out_piece(int(a[1]))
        elif a[0] == "s": s_tiles(int(a[1]))
        elif a[0] == "x": softmax(int(a[1]))
        elif a.startswith("pv"): pv(int(a[2]))
        else: raise ValueError(a)
    anchor = next(o for o in P.ops if o.name == "mAQ000")
    anchor.deps += [(n, -1) for n in stateful + ["B1", "B2", "B3", "wB3"]]
    return P
```

```python
import sys
import struct
from asmlib import *
from body import *

KNAME = "standalone__window_attn_swin_v2__vision_kernel"
PITCH = 196224
LOG2E = 1.4426950408889634
L_STG = 3 * RING
L_SCR = L_LN
L_MEAN = L_SCR + 3072
LDS_TOTAL = 163840
S_W, S_WOD = 32, 36
S_H, S_SO0, S_CNT0, S_NW, S_R0, S_C0, S_MASKW = 68, 69, 70, 71, 72, 73, 74
OOB = 0x40000000
TAU_FAST = 40.0

FIXED = dict(V22=180, V21=184, V20=188, P2=192, ONES=196, SEL=200, BT=204)
for _i, _n in enumerate(["aF0", "aF1", "aW1", "aW2", "aL", "aB", "aE1", "aE2", "aNw", "aNr", "g0", "g1", "g2", "g3", "g4"]):
    FIXED[_n] = 208 + _i
POOL = list(range(0, 224))


def f32(x):
    return "0x%08x" % struct.unpack("<I", struct.pack("<f", x))[0]


def R(n):
    return f"v{FIXED[n]}"


class Seq:
    def __init__(self):
        self.ops = []

    def __call__(self, text, **kw):
        for line in text.strip().split("\n"):
            line = line.split(";")[0].strip()
            if line:
                self.ops.append(Ins(line, **kw))


LANE, C, G = "v1", "v2", "v3"


def lane_ids(A):
    A(f"""
    v_mbcnt_lo_u32_b32 {LANE}, -1, 0
    v_mbcnt_hi_u32_b32 {LANE}, -1, {LANE}
    v_and_b32 {C}, 15, {LANE}
    v_lshrrev_b32 {G}, 4, {LANE}""")


def piece_index(A, j, lam, q):
    A(f"""
    v_add_u32 v4, {64 * j}, {LANE}
    v_mul_u32_u24 {lam}, 2731, v4
    v_lshrrev_b32 {lam}, 16, {lam}
    v_mul_u32_u24 v5, 24, {lam}
    v_sub_u32 v5, v4, v5
    v_and_b32 v6, 3, {lam}
    v_lshl_add_u32 v6, s{S_H}, 2, v6
    v_and_b32 {q}, 7, v6
    v_xor_b32 {q}, {q}, v5""")


def wrap_mul(A, dst, src, sbase, mul):
    A(f"""
    v_add_u32 {dst}, s{sbase}, {src}
    v_subrev_u32 v9, 511, {dst}
    v_min_u32 {dst}, {dst}, v9
    s_mov_b32 s{S_T}, {mul}
    v_mul_lo_u32 {dst}, {dst}, s{S_T}""")


def e_offsets(A, regs):
    A(f"""
    s_add_u32 s75, s{S_R0}, 6
    s_sub_u32 s76, s75, 511
    s_min_u32 s75, s75, s76
    s_mul_i32 s75, s75, {PITCH}
    s_add_u32 s76, s{S_C0}, 6
    s_sub_u32 s77, s76, 511
    s_min_u32 s76, s76, s77
    s_mul_i32 s76, s76, 384
    s_add_u32 s75, s75, s76
    s_add_u32 s75, s75, s{S_SO0}
    s_sub_u32 s76, 72, s{S_CNT0}""")
    for j, d in enumerate(regs):
        piece_index(A, j, "v7", "v8")
        A(f"""
        v_lshrrev_b32 v7, 2, v7
        v_lshl_add_u32 v7, v7, 4, v6
        v_mul_lo_u32 {d}, v7, s{S_STA}
        v_lshl_add_u32 {d}, v8, 4, {d}
        v_add_u32 {d}, s75, {d}
        v_add_u32 v9, s{S_STB}, {d}
        v_cmp_le_u32 vcc, s76, v7
        v_cndmask_b32 {d}, {d}, v9, vcc
        v_mov_b32 v9, {OOB}
        v_cmp_gt_u32 vcc, s{S_NW}, v7
        v_cndmask_b32 {d}, v9, {d}, vcc""")


def prologue(opt):
    A = Seq()
    A(f"""
    s_cmp_ge_u32 s2, 256
    s_cbranch_scc1 L_end
    s_load_dwordx16 s[4:19], s[0:1], 0
    s_load_dwordx4 s[20:23], s[0:1], 64
    s_getpc_b64 s[78:79]
    v_lshlrev_b32 v10, 7, v0
    v_min_u32 v11, L_slow-{KNAME}-64, v10
    global_load_dword v11, v11, s[78:79]
    v_lshrrev_b32 v4, 6, v0
    v_readfirstlane_b32 s{S_H}, v4""")
    if opt.get("stamp"):
        A("s_memrealtime s[96:97]")
    lane_ids(A)
    A(f"s_mul_i32 s{S_T}, s{S_H}, 96")
    for j in range(3):
        A(f"""
        v_add_u32 v4, {64 * j}, {LANE}
        v_mul_u32_u24 v5, 10923, v4
        v_lshrrev_b32 v5, 16, v5
        v_mul_u32_u24 v6, 6, v5
        v_sub_u32 v6, v4, v6
        v_lshl_add_u32 v6, v6, 4, s{S_T}
        v_mul_u32_u24 v7, 384, v5
        v_add_u32 v{12 + j}, v7, v6
        v_mul_u32_u24 v7, 1152, v5
        v_add_u32 v{15 + j}, v7, v6""")
    A(f"""
    s_lshr_b32 s75, s2, 3
    s_and_b32 s75, s75, 7
    s_mul_i32 s75, s75, 27648
    s_mul_i32 s80, s{S_H}, 6144
    s_add_u32 s80, s80, {L_STG}
    s_waitcnt lgkmcnt(0)
    s_mov_b32 s{S_X}, s4
    s_mov_b32 s{S_X + 1}, s5
    s_mov_b32 s{S_X + 2}, {NBYTES}
    s_mov_b32 s{S_X + 3}, 0x20000
    s_mov_b32 s{S_OUT}, s22
    s_mov_b32 s{S_OUT + 1}, s23
    s_mov_b32 s{S_OUT + 2}, 0
    s_mov_b32 s{S_OUT + 3}, 0x20000
    s_mov_b32 s{S_W}, s6
    s_mov_b32 s{S_W + 1}, s7
    s_mov_b32 s{S_W + 2}, 221184
    s_mov_b32 s{S_W + 3}, 0x20000
    s_mov_b32 s{S_WOD}, s8
    s_mov_b32 s{S_WOD + 1}, s9
    s_mov_b32 s{S_WOD + 2}, 73728
    s_mov_b32 s{S_WOD + 3}, 0x20000
    s_load_dwordx2 s[82:83], s[10:11], 0
    buffer_load_dword v18, v10, s[{S_W}:{S_W + 3}], s75 offen""")
    for k in range(3):
        A(f"""
        v_add_u32 v4, {64 * k}, {LANE}
        v_min_u32 v4, 168, v4
        v_lshlrev_b32 v4, 2, v4
        global_load_dword v{20 + k}, v4, s[16:17]""")
    A("v_mov_b32 v4, 0")
    for k in range(4):
        A(f"global_load_dwordx4 v[{24 + 4 * k}:{27 + 4 * k}], v4, s[12:13] offset:{16 * k}")
    A(f"""
    v_lshlrev_b32 v4, 3, {C}
    v_lshl_add_u32 v4, s{S_H}, 1, v4
    global_load_ushort v23, v4, s[14:15]""")
    A(f"""
    v_lshrrev_b32 v4, 2, {C}
    v_mul_u32_u24 v4, 12, v4
    v_and_b32 v5, 3, {C}
    v_add_u32 v56, v4, v5
    v_add_u32 v57, 4, v56
    v_add_u32 v58, 8, v56
    v_mul_u32_u24 v59, 12, {G}""")
    for q in range(3):
        A(f"""
        v_mul_u32_u24 v4, 49, v{56 + q}
        v_add_u32 v{100 + q}, v4, v59
        v_add_u32 v{104 + q}, 48, v4
        v_lshlrev_b32 v5, 2, v{100 + q}
        v_lshlrev_b32 v6, 2, v{104 + q}""")
        for k in range(3):
            A(f"global_load_dwordx4 v[{60 + 12 * q + 4 * k}:{63 + 12 * q + 4 * k}], v5, s[18:19] offset:{16 * k}")
        A(f"global_load_dword v{96 + q}, v6, s[18:19]")
    A(f"""
    v_lshl_add_u32 v4, {G}, 2, v56
    v_mov_b32 v5, 48
    v_cmp_gt_u32 vcc, 3, {G}
    v_cndmask_b32 v4, v5, v4, vcc
    v_add_u32 v107, {48 * 49}, v4
    v_lshlrev_b32 v5, 2, v107
    global_load_dword v99, v5, s[18:19]""")

    def stage_chunk(ci):
        part, blk = divmod(ci, 3)
        srd, vb, ld = (S_WOD, 12, 384) if part == 0 else (S_W, 15, 1152)
        for j in range(6):
            so = (64 * blk + 32 * (j // 3)) * ld + (0 if part == 0 else 384 * (part - 1))
            A(f"""
            s_add_u32 m0, s80, {24576 * (ci % 4) + 1024 * j}
            s_mov_b32 s{S_T}, {so}""")
            A(f"buffer_load_dwordx4 v{vb + j % 3}, s[{srd}:{srd + 3}], s{S_T} offen lds", pub=[f"c{ci}"], need=[f"t{ci - 4}"])

    for ci in range(4):
        stage_chunk(ci)
    A(f"""
    s_mul_i32 s75, s2, 21
    s_mul_i32 s76, s75, 58255
    s_lshr_b32 s76, s76, 22
    s_mul_i32 s77, s76, 72
    s_sub_u32 s{S_CNT0}, s75, s77
    s_mul_i32 s76, s76, {7 * PITCH}
    s_mul_i32 s77, s{S_CNT0}, {7 * 384}
    s_add_u32 s{S_SO0}, s76, s77
    s_mov_b32 s{S_STA}, {7 * 384}
    s_mov_b32 s{S_STB}, {7 * PITCH - 72 * 7 * 384}
    s_mov_b32 s{S_R0}, 3
    s_mov_b32 s{S_C0}, 3
    s_mov_b32 s{S_MASKW}, 0
    s_cmp_eq_u32 s2, 246
    s_cselect_b32 s{S_NW}, 18, 21
    s_cmp_lt_u32 s2, 247
    s_cbranch_scc1 L_wdone
    s_mov_b32 s{S_CNT0}, 0
    s_mov_b32 s{S_NW}, 18
    s_sub_u32 s75, s2, 247
    s_mul_i32 s{S_SO0}, s75, {18 * 7 * PITCH}
    s_mov_b32 s{S_STA}, {7 * PITCH}
    s_mov_b32 s{S_C0}, 507
    s_mov_b32 s{S_MASKW}, {72 * 4802}
    s_cmp_lt_u32 s2, 251
    s_cbranch_scc1 L_wdone
    s_sub_u32 s75, s2, 251
    s_mul_i32 s{S_SO0}, s75, {18 * 7 * 384}
    s_mov_b32 s{S_STA}, {7 * 384}
    s_mov_b32 s{S_R0}, 507
    s_mov_b32 s{S_C0}, 3
    s_mov_b32 s{S_MASKW}, {72 * 73 * 4802}
    s_cmp_lt_u32 s2, 255
    s_cbranch_scc1 L_wdone
    s_mov_b32 s{S_SO0}, 0
    s_mov_b32 s{S_STA}, 0
    s_mov_b32 s{S_NW}, 1
    s_mov_b32 s{S_C0}, 507
    s_mov_b32 s{S_MASKW}, {5328 * 4802}
L_wdone:
    s_mul_i32 s{S_WOFF}, s{S_H}, 5120
    s_mul_i32 s81, s{S_H}, 12""")
    e_offsets(A, ["v108", "v109", "v110"])
    for j in range(3):
        A(f"s_add_u32 m0, s{S_WOFF}, {2 * RING + 1024 * j}")
        A(f"buffer_load_dwordx4 v{108 + j}, s[{S_X}:{S_X + 3}], 0 offen nt lds", pub=["x0"])
    for j in range(5):
        piece_index(A, j, "v7", "v8")
        A(f"""
        v_add_u32 v7, s81, v7
        v_mul_u32_u24 v4, 37, v7
        v_lshrrev_b32 v4, 8, v4
        v_mul_u32_u24 v5, 7, v4
        v_sub_u32 v5, v7, v5""")
        wrap_mul(A, "v4", "v4", S_R0, PITCH)
        wrap_mul(A, "v5", "v5", S_C0, 384)
        A(f"""
        v_add_u32 v4, v4, v5
        v_lshl_add_u32 {R(f'g{j}')}, v8, 4, v4""")
        if j == 4:
            A(f"""
            v_mov_b32 v9, {OOB}
            v_cmp_gt_u32 vcc, 32, {LANE}
            v_cndmask_b32 {R('g4')}, v9, {R('g4')}, vcc""")
        A(f"s_add_u32 m0, s{S_WOFF}, {1024 * j}")
        A(f"buffer_load_dwordx4 {R(f'g{j}')}, s[{S_X}:{S_X + 3}], s{S_SO0} offen nt lds", pub=["x0"])
    A("v_lshlrev_b32 v23, 16, v23")
    for k in range(3):
        A(f"""
        v_lshlrev_b32 v{116 + k}, 16, v{20 + k}
        v_and_b32 v{120 + k}, 0xffff0000, v{20 + k}
        v_mov_b32 v{112 + k}, 0""")
    for u in range(0, 16, 2):
        A(f"""
        v_lshlrev_b32 v4, 16, v{24 + u // 2}
        v_and_b32 v5, 0xffff0000, v{24 + u // 2}
        v_lshlrev_b32 v6, 16, v{32 + u // 2}
        v_and_b32 v7, 0xffff0000, v{32 + u // 2}
        v_readlane_b32 s75, v23, {u}
        v_readlane_b32 s76, v23, {u + 1}""")
        for k in range(3):
            A(f"""
            v_mul_f32 v8, v{116 + k}, v4
            v_mul_f32 v9, v{116 + k}, v5
            v_fmac_f32 v8, v{120 + k}, v6
            v_fmac_f32 v9, v{120 + k}, v7
            v_max_f32 v8, 0, v8
            v_max_f32 v9, 0, v9
            v_cvt_pk_bf16_f32 v8, v8, v9
            v_and_b32 v9, 0xffff0000, v8
            v_lshlrev_b32 v8, 16, v8
            v_fmac_f32 v{112 + k}, s75, v8
            v_fmac_f32 v{112 + k}, s76, v9""")
    A(f"""
    s_mul_i32 s75, s{S_H}, 768
    s_add_u32 s75, s75, {L_SCR}
    v_lshl_add_u32 v4, {LANE}, 2, s75
    s_mov_b32 s76, {f32(16 * LOG2E)}
    v_mov_b32 v5, {f32(-8 * LOG2E)}""")
    for k in range(3):
        z = f"v{112 + k}"
        A(f"""
        v_cvt_pk_bf16_f32 {z}, {z}, {z}
        v_lshlrev_b32 {z}, 16, {z}
        v_mul_f32 {z}, {f32(-LOG2E)}, {z}
        v_exp_f32 {z}, {z}
        v_add_f32 {z}, 1.0, {z}
        v_rcp_f32 {z}, {z}
        v_cvt_pk_bf16_f32 {z}, {z}, {z}
        v_lshlrev_b32 {z}, 16, {z}
        v_fma_f32 {z}, {z}, s76, v5
        ds_write_b32 v4, {z} offset:{256 * k}""")
    for r in range(60, 100):
        A(f"v_lshl_add_u32 v{r}, v{r}, 2, s75")
    for r in range(60, 100):
        A(f"ds_read_b32 v{r}, v{r}")
        if r % 8 == 3:
            A("s_waitcnt lgkmcnt(4)")
    A(f"""
    s_waitcnt lgkmcnt(0)
    s_lshl_b32 s75, s{S_H}, 4
    s_lshr_b64 s[82:83], s[82:83], s75
    s_lshl_b32 s82, s82, 16
    v_mov_b32 v4, s82
    v_min_f32 v4, {f32(4.59375)}, v4
    v_max_f32 v4, {f32(-100.0)}, v4
    v_mul_f32 v4, {f32(LOG2E)}, v4
    v_exp_f32 v4, v4
    v_cvt_pk_bf16_f32 v4, v4, v4
    v_lshlrev_b32 v4, 16, v4
    v_mul_f32 v4, {f32(LOG2E)}, v4
    v_readfirstlane_b32 s{S_TAU}, v4
    s_mov_b32 s{S_EPSQ}, {f32(0.25e-12)}
    s_mov_b32 s{S_EPSL}, {f32(192 * 1e-5 / 16)}
    s_mov_b32 s{S_SQ}, {f32(192 ** 0.5)}""")
    A(f"""
    s_cmp_lt_u32 s2, 247
    s_cbranch_scc1 L_nomask""")
    cut1 = len(A.ops)
    A(f"""
    s_add_u32 s20, s20, s{S_MASKW}
    s_addc_u32 s21, s21, 0
    s_mov_b32 s75, {f32(LOG2E)}
    s_waitcnt vmcnt(0)""")
    for q in range(3):
        A(f"v_lshlrev_b32 v4, 1, v{100 + q}")
        for k in range(12):
            A(f"global_load_ushort v{124 + 12 * q + k}, v4, s[20:21] offset:{2 * k}")
    for q in range(4):
        A(f"""
        v_lshlrev_b32 v4, 1, v{104 + q}
        global_load_ushort v{160 + q}, v4, s[20:21]""")
    A("s_waitcnt vmcnt(0)")
    for r in range(40):
        A(f"""
        v_lshlrev_b32 v4, 16, v{124 + r}
        v_fmac_f32 v{60 + r}, s75, v4""")
    bt = FIXED["BT"]
    cut2 = len(A.ops)
    A(f"""
L_nomask:
    v_mov_b32 v4, {f32(-1e30)}
    v_cmp_gt_u32 vcc, 16, {LANE}
    v_cndmask_b32 v{bt}, v4, v96, vcc
    v_cndmask_b32 v{bt + 1}, v4, v97, vcc
    v_cndmask_b32 v{bt + 2}, v4, v98, vcc
    v_cmp_gt_u32 vcc, 49, {LANE}
    v_cndmask_b32 v{bt + 3}, v4, v99, vcc""")
    on, se = FIXED["ONES"], FIXED["SEL"]
    for k in range(4):
        A(f"v_mov_b32 v{on + k}, 0x3f803f80")
    A(f"""
    v_and_b32 v4, 1, {LANE}
    v_lshlrev_b32 v4, 4, v4
    v_mov_b32 v5, 0x3f80
    v_lshlrev_b32 v4, v4, v5
    v_and_b32 v5, 2, {LANE}
    v_cmp_eq_u32 vcc, 0, v5
    v_cndmask_b32 v{se}, 0, v4, vcc
    v_cndmask_b32 v{se + 2}, 0, v4, vcc
    v_cmp_ne_u32 vcc, 0, v5
    v_cndmask_b32 v{se + 1}, 0, v4, vcc
    v_cndmask_b32 v{se + 3}, 0, v4, vcc""")
    A(f"""
    v_lshrrev_b32 v4, 2, {C}
    v_lshl_add_u32 v4, {G}, 3, v4
    v_mul_u32_u24 v4, 96, v4
    v_add_u32 v4, s80, v4
    v_and_b32 v5, 3, {C}
    v_lshl_add_u32 v18, v5, 4, v4
    v_lshl_add_u32 v19, v5, 3, v4
    v_add_u32 v19, 64, v19
    v_lshrrev_b32 v4, 2, {C}
    v_lshl_add_u32 v4, v4, 3, v5
    v_mul_u32_u24 v4, 96, v4
    v_lshl_add_u32 v20, {G}, 4, v4
    v_lshl_add_u32 v21, {G}, 3, v4
    v_add_u32 v21, 64, v21""")

    def tr_chunk(ci, dst):
        part, blk = divmod(ci, 3)
        area = 24576 * (ci % 4)
        hi = area >= 49152
        for sl in range(2):
            for j in range(3):
                f, b = dst(j, 2 * blk + sl)
                for a in range(2):
                    off = area - (49152 if hi else 0) + (32 * sl + 4 * a) * 96 + (8 * j if j < 2 else 0)
                    ad = (18 if j < 2 else 19) + (4 if hi else 0)
                    A(f"ds_read_b64_tr_b16 {f}[{b + 2 * a}:{b + 2 * a + 1}], v{ad} offset:{off}", need=[f"c{ci}"], pub=[f"t{ci}"])

    A("""
    v_add_u32 v22, 49152, v18
    v_add_u32 v23, 49152, v19""")
    A("s_barrier", need=["c0", "c1", "c2"])
    for k in range(3):
        A(f"""
        s_mul_i32 s75, s{S_H}, 3
        s_add_u32 s75, s75, {k}
        s_lshr_b32 s76, s75, 2
        s_mul_i32 s76, s76, 24576
        s_bfe_u32 s77, s75, 0x10001
        s_mul_i32 s77, s77, {32 * 96}
        s_add_u32 s76, s76, s77
        s_and_b32 s77, s75, 1
        s_mul_i32 s77, s77, {4 * 96}
        s_add_u32 s76, s76, s77
        s_add_u32 s76, s76, {L_STG}
        v_add_u32 v4, s76, v20
        v_add_u32 v5, s76, v21""")
        for w in range(4):
            A(f"ds_read_b128 v[{24 + 6 * w}:{27 + 6 * w}], v4 offset:{6144 * w}")
            A(f"ds_read_b64 v[{28 + 6 * w}:{29 + 6 * w}], v5 offset:{6144 * w}")
        for w in range(4):
            A(f"{M32} v[48:51], v[{24 + 6 * w}:{27 + 6 * w}], v[{on}:{on + 3}], {'0' if w == 0 else 'v[48:51]'}")
        for w in range(4):
            A(f"{M16} v[48:51], v[{28 + 6 * w}:{29 + 6 * w}], v[{on}:{on + 1}], v[48:51]")
        tr_chunk(k, lambda j, s: ("v", 100 + 4 * (6 * j + s)))
        for r in range(4):
            A(f"v_mul_f32 v{48 + r}, {f32(-1.0 / 192)}, v{48 + r}")
        A(f"""
        s_lshl_b32 s75, s75, 6
        s_add_u32 s75, s75, {L_MEAN}
        v_lshl_add_u32 v4, {G}, 4, s75
        ds_write_b128 v4, v[48:51]""")
    A("""
    s_waitcnt lgkmcnt(0)
    s_barrier""")
    for ci in (4, 5, 6):
        stage_chunk(ci)
    A(f"""
    v_lshlrev_b32 v4, 4, {G}
    v_add_u32 v59, {L_MEAN}, v4""")

    def center(s):
        A(f"ds_read_b128 v[24:27], v59 offset:{128 * s}")
        A(f"ds_read_b128 v[28:31], v59 offset:{128 * s + 64}")
        for j in range(3):
            k = 6 * j + s
            for p in range(4):
                r = 100 + 4 * k + p
                A(f"""
                v_lshlrev_b32 v4, 16, v{r}
                v_and_b32 v5, 0xffff0000, v{r}
                v_add_f32 v4, v4, v{24 + 2 * p}
                v_add_f32 v5, v5, v{25 + 2 * p}""")
                if k < 10:
                    A(f"""
                    v_cvt_pk_bf16_f32 v4, v4, v5
                    v_accvgpr_write_b32 a{216 + 4 * k + p}, v4""")
                else:
                    A(f"v_cvt_pk_bf16_f32 v{224 + 4 * (k - 10) + p}, v4, v5")

    for ci in range(3, 12):
        part = ci // 3
        tr_chunk(ci, lambda j, s: ("a", 72 * (part - 1) + wq(j, s)))
        if ci + 4 < 12:
            stage_chunk(ci + 4)
        if ci == 7:
            A(f"""
            s_add_u32 s{S_SO}, s{S_SO0}, s{S_STA}
            s_add_u32 s{S_CNT}, s{S_CNT0}, 1
            s_cmp_eq_u32 s{S_CNT}, 72
            s_cselect_b32 s{S_T}, s{S_STB}, 0
            s_cselect_b32 s{S_CNT}, 0, s{S_CNT}
            s_add_u32 s{S_SO}, s{S_SO}, s{S_T}""")
            for j in range(5):
                A(f"s_add_u32 m0, s{S_WOFF}, {RING + 1024 * j}")
                A(f"buffer_load_dwordx4 {R(f'g{j}')}, s[{S_X}:{S_X + 3}], s{S_SO} offen nt lds")
        if ci - 3 < 6:
            center(ci - 3)
    A(f"""
    v_lshrrev_b32 v4, 2, {C}
    v_mul_u32_u24 v4, 5120, v4
    v_and_b32 v5, 3, {C}
    v_mul_u32_u24 v6, 384, v5
    v_add_u32 v4, v4, v6
    v_and_b32 v6, 7, {C}
    v_xor_b32 v7, v6, {G}
    v_lshl_add_u32 v7, v7, 4, v4
    v_add_u32 {R('aF0')}, {2 * RING}, v7
    v_xor_b32 {R('aF1')}, 64, {R('aF0')}
    s_mul_i32 s75, s{S_H}, 6
    v_add_u32 v4, {3 * RING}, v4
    v_add_u32 v7, s75, {G}
    v_xor_b32 v7, v6, v7
    v_lshl_add_u32 {R('aW1')}, v7, 4, v4
    v_lshrrev_b32 v7, 1, {G}
    v_add3_u32 v7, v7, s75, 4
    v_xor_b32 v7, v6, v7
    v_lshl_add_u32 v7, v7, 4, v4
    v_and_b32 v8, 1, {G}
    v_lshl_add_u32 {R('aW2')}, v8, 3, v7
    v_lshlrev_b32 v4, 4, {LANE}
    s_add_u32 s75, s{S_WOFF}, {RING}
    v_add_u32 {R('aL')}, s75, v4
    s_mul_i32 s75, s{S_H}, 9216
    s_add_u32 s75, s75, {L_BIAS}
    v_add_u32 {R('aB')}, s75, v4
    v_add_u32 {R('aNr')}, {L_LN}, v4
    s_lshr_b32 s75, s{S_H}, 1
    s_lshl_b32 s75, s75, 10
    s_and_b32 s76, s{S_H}, 1
    s_lshl_b32 s76, s76, 3
    s_add_u32 s75, s75, s76
    v_add_u32 {R('aNw')}, s75, {R('aNr')}
    s_mul_i32 s75, s{S_H}, {32 * E_REC}
    s_add_u32 s75, s75, {L_E - E_REC}
    v_mul_u32_u24 v4, 80, {G}
    v_add_u32 {R('aE1')}, s75, v4
    v_mul_u32_u24 v6, {E_REC}, {C}
    v_add_u32 v223, v6, {R('aE1')}
    v_lshrrev_b32 v4, 2, {C}
    v_mul_u32_u24 v4, 80, v4
    v_lshl_add_u32 v4, {G}, 3, v4
    v_lshl_add_u32 v4, v5, 1, v4
    v_add_u32 {R('aE2')}, s75, v4
    s_mov_b32 s{S_B}, {3 * RING}
    s_mov_b32 s{S_B + 1}, {2 * RING}
    s_mov_b32 s{S_B + 2}, {RING}
    s_mov_b32 s{S_B + 3}, 0
    s_mov_b32 s{S_SO + 1}, s{S_SO0}
    s_mov_b32 s{S_SO + 2}, 0
    s_mov_b32 s{S_SO + 3}, 0
    s_mov_b32 s{S_SO + 4}, 0
    s_sub_u32 s{S_REM}, s{S_NW}, 1
    s_mov_b32 s{S_IT}, -1
    s_mov_b32 s{S_N}, {opt.get('niter') or f's{S_NW}'}""")
    for n in ("P2", "V20", "V21", "V22"):
        A(f"v_mov_b32 v{FIXED[n] + 3}, 0")
    A("s_waitcnt lgkmcnt(0)")
    A("s_barrier", need=["x0"])
    for k in range(9):
        A(f"ds_write_b128 {R('aB')}, v[{60 + 4 * k}:{63 + 4 * k}] offset:{1024 * k}")
    return A.ops[:cut1], A.ops[cut1:cut2], A.ops[cut2:]


def e_head():
    P = Prog()
    P.v("P2", 4)
    ad = P.v("aRec", 1)
    for t in range(2):
        frag_reads(P, "X", t)
        qk_chains(P, t)
        chain(P, f"AV{t}0", WV, 0, "X", t)
        norm_reduce(P, t, "%P2")
        q, k, hh, v, w = (P.v(f"{n}{t}", 4) for n in ("rq", "rk", "rh", "rv", "rw"))
        pack(P, f"AV{t}0", v, 0)
        chain(P, f"AV{t}1", WV, 1, "X", t)
        pack(P, f"AV{t}1", v, 2)
        chain(P, f"AV{t}2", WV, 2, "X", t)
        for nm, lo, off, rs in (("Q", q, 0, f"%NR{t}[0]"), ("K", k, 2, f"%NR{t}[1]")):
            scale_pack(P, f"A{nm}{t}0", rs, lo, 0)
            scale_pack(P, f"A{nm}{t}1", rs, lo, 2)
            scale_pack(P, f"A{nm}{t}2", rs, hh, off)
        pack(P, f"AV{t}2", w, 0)
        P(f"v_mov_b32 {w}[2], 0")
        P(f"v_mov_b32 {w}[3], 0")
        for i, r in enumerate((q, k, hh, v, w)):
            P(f"ds_write_b128 {ad}, {r} offset:{E_REC + 16 * E_REC * t + 16 * i}")
    return finite(P, dict(FIXED, aRec=223), list(range(0, 180)))


def e_tail():
    A = Seq()
    A(f"""
    s_waitcnt vmcnt(10) lgkmcnt(0)
    s_barrier""")
    lane_ids(A)
    e_offsets(A, ["v170", "v171", "v172"])
    A(f"""
    s_sub_u32 s75, s{S_B}, s{S_B + 2}
    v_add_u32 {R('aL')}, s75, {R('aL')}
    v_mul_u32_u24 v10, {E_REC}, {C}
    v_add_u32 v10, {L_E}, v10""")
    for s in range(3):
        A(f"""
        v_add_u32 v4, {4 * s}, {G}
        v_cmp_le_u32 vcc, 6, v4
        v_subrev_u32 v5, 6, v4
        v_cndmask_b32 v4, v4, v5, vcc
        v_add_u32 v5, {32 * E_REC}, v10
        v_cndmask_b32 v5, v10, v5, vcc
        v_mul_u32_u24 v6, 80, v4
        v_add_u32 v7, 48, v6
        v_add_u32 v8, 56, v6
        v_lshlrev_b32 v6, 1, v6
        v_subrev_u32 v9, {640 - 64}, v6
        v_subrev_u32 v6, {640 - 144}, v6
        v_cmp_le_u32 vcc, 4, v4
        v_cndmask_b32 v7, v7, v9, vcc
        v_cndmask_b32 v8, v8, v6, vcc
        v_add_u32 v{174 + 2 * s}, v5, v7
        v_add_u32 v{175 + 2 * s}, v5, v8""")
    P = Prog()
    for t in range(2):
        for s in range(6):
            x = P.v(f"OF{t}{s}", 4)
            for k in range(2):
                P(f"ds_read_b64 {x}[{2 * k}:{2 * k + 1}], v{174 + 2 * (s % 3) + k} offset:{16 * E_REC * t + 64 * E_REC * (s // 3)}")
        for j in range(3):
            chain(P, f"Y{t}{j}", WO, j, "OF", t)
            sumsq(P, f"ssY{t}", f"Y{t}{j}", j == 0, S_EPSL)
    lp = P.v("LP", 2)
    P(f"v_cvt_pk_bf16_f32 {lp}[0], %ssY0, %ssY1")
    P(f"v_mov_b32 {lp}[1], 0")
    P(f"ds_write_b64 %aNw, {lp}", name="wLN", pub=["e1"])
    P("s_barrier", name="B1", need=["e1"], deps=[("wLN", 0)])
    for k in range(2):
        P(f"ds_read_b128 {P.v(f'LR{k}', 4)}, %aNr offset:{1024 * k}", deps=[("B1", 0)])
    d = P.v("LD", 4)
    P(f"{M32} {d}, %SEL, %LR0, 0", chain="LN")
    P(f"{M32} {d}, %SEL, %LR1, {d}", chain="LN")
    yw = []
    for t in range(2):
        P(f"v_rsq_f32 {d}[{t}], {d}[{t}]")
        P(f"v_mul_f32 {d}[{t}], s{S_SQ}, {d}[{t}]")
        lo, hi = P.v(f"Ylo{t}", 4), P.v(f"Yhi{t}", 2)
        scale_pack(P, f"Y{t}0", f"%LD[{t}]", lo, 0)
        scale_pack(P, f"Y{t}1", f"%LD[{t}]", lo, 2)
        scale_pack(P, f"Y{t}2", f"%LD[{t}]", hi, 0)
        yw += tile_write(P, lo, hi, t, f"wY{t}", pub=["e2"])
    P("s_barrier", name="B2", need=["e2"], deps=[(n, 0) for n in yw])
    for j in range(3):
        z = P.v(f"Z{j}", 4)
        P(f"ds_read_b128 {z}, %aL offset:{1024 * j}", deps=[("B2", 0)])
        P(f"buffer_store_dwordx4 {z}, v{170 + j}, s[{S_OUT}:{S_OUT + 3}], 0 offen sc1")
    return A.ops + finite(P, FIXED, list(range(0, 170)))


def finite(P, fixed, pool):
    sch = schedule(P.ops, 1, look_m=40, look_d=14)
    ops = [x.op for x in sch if x.li >= 0]
    al, pr = allocate(ops, P.vs, pool, False, persistent=list(fixed), fixed=fixed)
    assert check_dataflow(sch, al) == 0
    return [o.clone_with_text(substitute(o.text, al, P.vs)) for o in ops]


def pipelined(tag, safe_max, opt):
    P = loop_program(safe_max, opt)
    sch = schedule(P.ops, 7, **opt.get("sched", dict(look_m=24, look_d=14, look_v=60)))
    body, cyc, same = extract_period(sch, "mAQ000", 3)
    assert same, "schedule is not periodic"
    body = [(o, s) for o, s in body if o.name != "_nop"]
    body = body[1:] + [(body[0][0], body[0][1] - 1)]
    ops = [o for o, s in body]
    al, pr = allocate(ops, P.vs, POOL, True, persistent=PERSIST, fixed=FIXED)
    a = next(k for k, x in enumerate(sch) if x.op.name == "mAQ000" and x.it == 3)
    b = next(k for k, x in enumerate(sch) if x.op.name == "mAQ000" and x.it == 5)
    mid = next(k for k, x in enumerate(sch) if x.op.name == "mAQ000" and x.it == 4)
    e_all, e_first = check_dataflow(sch[a:b], al), check_dataflow(sch[a:mid], al)
    assert e_all == e_first, "dataflow check failed"
    phys = [(o.clone_with_text(substitute(o.text, al, P.vs)), s) for o, s in body]
    assert all(s in (-1, 0, 1) for o, s in phys)
    entry = [o.clone_with_text(o.text) for o, s in phys if s == -1]
    tail = []
    for d in range(3):
        for o, s in phys:
            u = d - s
            if (o.stage == -9 and u <= 1) or (o.stage != -9 and u + o.stage <= -1):
                tail.append(o.clone_with_text(o.text))
    loop = [o for o, s in phys]
    sccw = [k for k, o in enumerate(loop) if ("scc", 0) in o.dset or ("scc", 0) in o.uset]
    assert ("scc", 0) in loop[sccw[0]].dset and ("scc", 0) not in loop[sccw[0]].uset
    ms = [k for k, o in enumerate(loop) if o.kind == "mfma" and k > sccw[-1]]
    free = [k for k in ms[:-1] if loop[k + 1].kind not in ("salu", "barrier", "wait")]
    ctl = [Ins(f"s_sub_u32 s{S_N}, s{S_N}, 1"), Ins(f"s_cmp_lg_u32 s{S_N}, 0")]
    if len(free) >= 2:
        loop.insert(free[1] + 1, ctl[1])
        loop.insert(free[0] + 1, ctl[0])
    else:
        loop[-1:-1] = ctl
    loop.append(Ins(f"s_cbranch_scc1 L_loop{tag}"))
    print(f"[{tag}] period {cyc} cycles, pressure {pr}, max reg {max(al[n] + P.vs[n] for n in al if n not in FIXED)}", file=sys.stderr)
    return entry, loop, tail


def dump_code(opt):
    s = f"""    s_waitcnt vmcnt(0) lgkmcnt(0)
    s_nop 15
    s_barrier
    s_cmp_lg_u32 s2, {opt.get('dumpwg', 0)}
    s_cbranch_scc1 L_end
    s_load_dwordx2 s[94:95], s[0:1], 88
    v_mbcnt_lo_u32_b32 v223, -1, 0
    v_mbcnt_hi_u32_b32 v223, -1, v223
    v_lshlrev_b32 v223, 2, v223
    s_lshl_b32 s75, s{S_H}, 17
    v_add_u32 v223, s75, v223
    s_waitcnt lgkmcnt(0)
"""
    for f in "va":
        for r in range(256):
            s += f"    global_store_dword v223, {f}{r}, s[94:95] offset:{256 * (r % 8)}\n"
            if r % 8 == 7:
                s += "    v_add_u32 v223, 2048, v223\n    s_waitcnt vmcnt(8)\n"
    s += f"""    s_waitcnt vmcnt(0)
    v_mbcnt_lo_u32_b32 v0, -1, 0
    v_mbcnt_hi_u32_b32 v0, -1, v0
    v_lshlrev_b32 v0, 4, v0
    s_lshl_b32 s75, s{S_H}, 10
    v_add_u32 v0, s75, v0
    v_add_u32 v1, 0x80000, v0
"""
    for k in range(40):
        s += "    ds_read_b128 v[4:7], v0\n    s_waitcnt lgkmcnt(0)\n    global_store_dwordx4 v1, v[4:7], s[94:95]\n    v_add_u32 v0, 4096, v0\n    v_add_u32 v1, 4096, v1\n    s_waitcnt vmcnt(0)\n"
    return s + "    s_endpgm\n"


def build(opt):
    p1, pm, p2 = prologue(opt)
    blocks = dict(pro1=p1, mask=pm, pro2=p2, eh=e_head(), et=e_tail())
    for tag, safe in (("F", False), ("S", True)):
        blocks["en" + tag], blocks["lp" + tag], blocks["tl" + tag] = pipelined(tag, safe, opt)
    paths = []
    for tag in "FS":
        paths.append(["lp" + tag] * 3)
        for n in (1, 2, 3):
            for pre in (["pro1", "pro2"], ["pro1", "mask", "pro2"]):
                paths.append(pre + ["eh", "en" + tag] + ["lp" + tag] * n + ["tl" + tag, "et"])
    blocks = insert_waits(blocks, paths)
    assert blocks["pro2"][0].kind == "label"
    q1 = fix_hazards(blocks["pro1"])
    qm = fix_hazards(blocks["mask"], q1[-12:])
    q2 = fix_hazards(blocks["pro2"], q1[-12:])
    assert not check_hazards(qm + q2)
    blocks["pro"] = q1 + qm + q2
    blocks["eh"] = fix_hazards(blocks["eh"], blocks["pro"][-12:])
    for tag in "FS":
        en, lp, tl = "en" + tag, "lp" + tag, "tl" + tag
        blocks[en] = fix_hazards(blocks[en], blocks["eh"][-12:])
        n0 = len(blocks[lp])
        blocks[lp] = fix_hazards(blocks[lp], blocks[lp][-12:])
        blocks[en] = blocks[en] + [Ins("s_nop 7")]
        blocks[tl] = fix_hazards(blocks[tl], blocks[lp][-12:]) + [Ins("s_nop 7")]
        assert not check_hazards(blocks[lp] * 2)
        print(f"[{tag}] loop {len(blocks[lp])} instrs ({len(blocks[lp]) - n0} nops), est {estimate_cycles(blocks[lp])} cyc; "
              f"entry {estimate_cycles(blocks[en])}, tail {estimate_cycles(blocks[tl])}", file=sys.stderr)
    blocks["et"] = fix_hazards(blocks["et"])
    print(f"pro est {estimate_cycles(blocks['pro'])}, ehead {estimate_cycles(blocks['eh'])}, etail {estimate_cycles(blocks['et'])}", file=sys.stderr)

    def txt(seq):
        return "".join((o.text if o.kind == "label" else "    " + o.text) + "\n" for o in seq)

    def stamp(k):
        if opt.get("dump") == k:
            return dump_code(opt)
        return f"    s_memrealtime s[{84 + 2 * k}:{85 + 2 * k}]\n" if opt.get("stamp") else ""

    ref = open("standalone__window_attn_swin_v2__vision.s.ref").read().split("\n")
    head = [l for l in ref if l.startswith(";") and "@launch" not in l]
    s = "\n".join(head) + f"\n; @launch grid=(256,1,1) block=(256,1,1) lds={LDS_TOTAL}\n"
    s += f""".amdgcn_target "amdgcn-amd-amdhsa--gfx950"
.text
.globl {KNAME}
.p2align 8
.type {KNAME},@function
{KNAME}:
"""
    s += txt(blocks["pro"]) + stamp(0) + txt(blocks["eh"]) + stamp(1)
    thr = f32(-1.0) if opt.get("force_slow") else f32(TAU_FAST * LOG2E)
    s += f"    s_cmp_gt_i32 s{S_TAU}, {thr}\n    s_cbranch_scc1 L_slow\n"
    s += txt(blocks["enF"]) + ".p2align 6\nL_loopF:\n" + txt(blocks["lpF"]) + stamp(2) + txt(blocks["tlF"])
    s += "L_etail:\n" + stamp(3) + txt(blocks["et"])
    if opt.get("stamp"):
        s += f"""    s_waitcnt vmcnt(0)
    s_memrealtime s[92:93]
    s_load_dwordx2 s[94:95], s[0:1], 88
    s_waitcnt lgkmcnt(0)
    v_mov_b32 v4, s96
    v_mov_b32 v5, s84
    v_mov_b32 v6, s86
    v_mov_b32 v7, s88
    v_mov_b32 v8, s90
    v_mov_b32 v9, s92
    s_lshl_b32 s75, s2, 2
    s_add_u32 s75, s75, s{S_H}
    s_lshl_b32 s75, s75, 5
    v_mov_b32 v10, s75
    global_store_dwordx4 v10, v[4:7], s[94:95]
    global_store_dwordx2 v10, v[8:9], s[94:95] offset:16
"""
    s += "L_end:\n    s_endpgm\n"
    s += "L_slow:\n" + txt(blocks["enS"]) + ".p2align 6\nL_loopS:\n" + txt(blocks["lpS"]) + txt(blocks["tlS"]) + "    s_branch L_etail\n"
    s += f""".section .rodata,"a"
.p2align 6
.amdhsa_kernel {KNAME}
  .amdhsa_next_free_vgpr 512
  .amdhsa_next_free_sgpr 102
  .amdhsa_accum_offset 256
  .amdhsa_group_segment_fixed_size 0
  .amdhsa_kernarg_size 96
  .amdhsa_user_sgpr_count 2
  .amdhsa_user_sgpr_kernarg_segment_ptr 1
  .amdhsa_system_sgpr_workgroup_id_x 1
.end_amdhsa_kernel
"""
    return s


if __name__ == "__main__":
    out = sys.argv[1] if len(sys.argv) > 1 else "standalone__window_attn_swin_v2__vision.s"
    opt = {}
    for a in sys.argv[2:]:
        k, _, v = a.partition("=")
        opt[k] = eval(v) if v else True
    open(out, "w").write(build(opt))
```

```python
import re
import random

TRANS = ("v_exp_f32", "v_rsq_f32", "v_rcp_f32", "v_log_f32", "v_sqrt_f32")
_REG = re.compile(r"^([vas])(\d+)$")
_RNG = re.compile(r"^([vas])\[(\d+):(\d+)\]$")
_VR1 = re.compile(r"^%(\w+)$")
_VR2 = re.compile(r"^%(\w+)\[(\d+)\]$")
_VR3 = re.compile(r"^%(\w+)\[(\d+):(\d+)\]$")
_VSUB = re.compile(r"%(\w+)(?:\[(\d+)(?::(\d+))?\])?")


def parse_operand(tok, vsize):
    tok = tok.strip()
    if tok.startswith("-"):
        tok = tok[1:]
    if tok.startswith("abs(") and tok.endswith(")"):
        tok = tok[4:-1]
    if tok.startswith("|") and tok.endswith("|"):
        tok = tok[1:-1]
    m = _REG.match(tok)
    if m:
        return [(m.group(1), int(m.group(2)))]
    m = _RNG.match(tok)
    if m:
        return [(m.group(1), i) for i in range(int(m.group(2)), int(m.group(3)) + 1)]
    m = _VR1.match(tok)
    if m:
        return [("%" + m.group(1), i) for i in range(vsize[m.group(1)])]
    m = _VR2.match(tok)
    if m:
        assert int(m.group(2)) < vsize[m.group(1)], tok
        return [("%" + m.group(1), int(m.group(2)))]
    m = _VR3.match(tok)
    if m:
        assert int(m.group(3)) < vsize[m.group(1)], tok
        return [("%" + m.group(1), i) for i in range(int(m.group(2)), int(m.group(3)) + 1)]
    if tok in ("vcc", "exec", "m0", "scc"):
        return [(tok, 0)]
    return []


def split_ops(s):
    out, depth, cur = [], 0, ""
    for ch in s:
        if ch == "[":
            depth += 1
        elif ch == "]":
            depth -= 1
        if ch == "," and depth == 0:
            out.append(cur)
            cur = ""
        else:
            cur += ch
    if cur.strip():
        out.append(cur)
    return [o.strip() for o in out]


class Ins:
    def __init__(self, text, vsize=None, name=None, stage=0, deps=(), pub=(), need=(), chain=None, **kw):
        self.text = text.strip()
        self.name = name
        self.stage = stage
        self.deps = list(deps)
        self.pub = list(pub)
        self.need = list(need)
        self.chain = chain
        self.attr = kw
        self.parse(vsize or {})

    def clone_with_text(self, text):
        n = Ins(text, None, self.name, self.stage, self.deps, self.pub, self.need, self.chain, **self.attr)
        return n

    def parse(self, vsize):
        t = self.text
        self.defs, self.uses, self.srcC, self.data = [], [], [], []
        self.dpp = self.perm = False
        self.slots = 1
        if t.startswith(";!"):
            head = t.split("\n", 1)[0][2:]
            d, u = head.split("|")
            self.mn, self.kind, self.trans = "macro", ("salu" if self.attr.get("as_salu") else "valu"), False
            self.defs = [r for o in split_ops(d) for r in parse_operand(o, vsize)]
            self.uses = [r for o in split_ops(u) for r in parse_operand(o, vsize)]
            self.slots = self.attr.get("cost", 2)
            self.dset, self.uset = set(self.defs), set(self.uses)
            return
        if t.endswith(":") or t.startswith("."):
            self.mn, self.kind, self.slots = t, "label", 0
            return
        parts = t.split(None, 1)
        mn = self.mn = parts[0]
        rest = parts[1] if len(parts) > 1 else ""
        ops = split_ops(rest)
        mods = ""
        if ops:
            last = ops[-1].split(None, 1)
            ops[-1] = last[0]
            mods = last[1] if len(last) > 1 else ""
        R = [parse_operand(o, vsize) for o in ops]
        flat = lambda xs: [r for x in xs for r in x]
        if mn.startswith("v_mfma"):
            self.kind, self.slots = "mfma", 2
            self.defs, self.srcC = R[0], R[3]
            self.uses = R[1] + R[2] + R[3]
            self.ab = R[1] + R[2]
        elif mn.startswith("ds_read"):
            self.kind = "dsr"
            self.defs, self.uses = R[0], R[1]
        elif mn.startswith("ds_write"):
            self.kind = "dsw"
            self.uses = flat(R)
            self.slots = len(self.uses)
        elif mn.startswith("ds_bpermute") or mn.startswith("ds_swizzle"):
            self.kind = "dsr"
            self.defs, self.uses = R[0], flat(R[1:])
            self.slots = len(self.uses)
        elif mn.startswith("buffer_load"):
            if re.search(r"\blds\b", mods):
                self.kind = "dma"
                self.uses = flat(R) + [("m0", 0)]
            else:
                self.kind = "vld"
                self.defs, self.uses = R[0], flat(R[1:])
        elif mn.startswith("global_load"):
            self.kind = "vld"
            self.defs, self.uses = R[0], flat(R[1:])
            if "d16_hi" in mn:
                self.uses = self.uses + R[0]
        elif mn.startswith("buffer_store"):
            self.kind = "vst"
            self.uses, self.data = flat(R), R[0]
        elif mn.startswith("global_store"):
            self.kind = "vst"
            self.uses, self.data = flat(R), R[1]
        elif mn.startswith("v_"):
            self.kind = "valu"
            base = re.sub(r"_(e32|e64|dpp|sdwa)$", "", mn)
            self.trans = base in TRANS
            self.dpp = mn.endswith("_dpp")
            self.perm = mn.startswith("v_permlane")
            if self.trans or self.perm:
                self.slots = 2
            self.defs, self.uses = R[0], flat(R[1:])
            if self.perm:
                self.defs = R[0] + R[1]
                self.uses = R[0] + R[1]
            if base.startswith("v_fmac") or base.startswith("v_pk_fmac") or base == "v_writelane_b32":
                self.uses = self.uses + R[0]
            if self.dpp and ("row_mask:0xf" not in mods or "bank_mask:0xf" not in mods):
                self.uses = self.uses + R[0]
            if base in ("v_add_co_u32", "v_addc_co_u32"):
                self.defs = R[0] + R[1]
                self.uses = flat(R[2:])
        elif mn == "s_waitcnt":
            self.kind = "wait"
        elif mn == "s_nop":
            self.kind = "nop"
            self.slots = int(ops[0]) + 1
        elif mn == "s_barrier":
            self.kind = "barrier"
        elif mn.startswith("s_cbranch") or mn in ("s_branch", "s_endpgm"):
            self.kind = "branch"
            if "scc" in mn:
                self.uses = [("scc", 0)]
            if "vcc" in mn:
                self.uses = [("vcc", 0)]
        elif mn.startswith("s_load") or mn in ("s_memtime", "s_memrealtime"):
            self.kind = "smem"
            self.defs, self.uses = R[0], flat(R[1:])
        elif mn.startswith("s_"):
            self.kind = "salu"
            if mn.startswith("s_cmp") or mn.startswith("s_bitcmp"):
                self.defs, self.uses = [("scc", 0)], flat(R)
            elif mn in ("s_setprio", "s_sleep"):
                pass
            else:
                self.defs, self.uses = R[0], flat(R[1:])
                if not (mn.startswith("s_mov") or mn.startswith("s_cselect") or mn.startswith("s_mul") or mn.startswith("s_getpc")):
                    self.defs = self.defs + [("scc", 0)]
                if mn.startswith("s_cselect") or mn in ("s_addc_u32", "s_subb_u32"):
                    self.uses = self.uses + [("scc", 0)]
                if "saveexec" in mn:
                    self.defs = self.defs + [("exec", 0)]
        else:
            raise ValueError("unknown instruction: " + t)
        self.dset, self.uset = set(self.defs), set(self.uses)

    @property
    def states(self):
        return self.slots if self.kind == "nop" else (0 if self.kind == "label" else 1)

    def __repr__(self):
        return f"<{self.name or ''} {self.text}>"


def is_sreg(r):
    return r[0] in ("s", "vcc")


def hazard(p, c):
    if p.kind == "label" or c.kind == "label":
        return 0
    w = 0
    if p.kind == "mfma":
        if c.kind == "mfma":
            if p.dset & set(c.ab):
                w = max(w, 8)
            if p.dset & set(c.srcC) and (p.defs != c.srcC or p.mn != c.mn):
                w = max(w, 6)
        else:
            if p.dset & (c.uset | c.dset):
                w = max(w, 8)
            if set(p.srcC) & c.dset:
                w = max(w, 3)
    elif p.kind == "valu":
        raw = p.dset & c.uset
        vraw = {r for r in raw if not is_sreg(r) and r[0] != "exec"}
        sraw = {r for r in raw if is_sreg(r)}
        if vraw:
            if c.kind == "mfma":
                w = max(w, 2)
            if c.kind == "valu":
                if c.dpp or c.perm:
                    w = max(w, 2)
                if p.trans or c.mn.startswith("v_readfirstlane") or c.mn.startswith("v_readlane"):
                    w = max(w, 1)
                if ("op_sel" in p.text and not p.mn.startswith("v_pk_") and p.mn != "v_fma_mix_f32") or "sdwa" in p.mn:
                    w = max(w, 1)
        if sraw:
            if c.kind == "valu":
                w = max(w, 4 if "lane" in c.mn else 2)
            elif c.kind in ("vld", "vst", "dma"):
                w = max(w, 5)
            else:
                w = max(w, 2)
    elif p.kind == "vst":
        if len(p.data) >= 3 and set(p.data) & c.dset:
            w = max(w, 2)
    elif p.kind == "salu":
        if ("m0", 0) in p.dset and c.kind == "dma":
            w = max(w, 1)
    elif p.kind == "dsr":
        if c.kind == "valu" and (c.dpp or c.perm) and p.dset & c.uset:
            w = max(w, 2)
    return w


def fix_hazards(seq, prefix=()):
    out = list(prefix)
    n0 = len(out)
    for c in seq:
        need, dist = 0, 0
        for p in reversed(out):
            if dist >= 10:
                break
            need = max(need, hazard(p, c) - dist)
            dist += p.states
        if need > 0:
            out.append(Ins(f"s_nop {need - 1}"))
        out.append(c)
    return out[n0:]


def check_hazards(seq):
    bad = []
    for i, c in enumerate(seq):
        dist = 0
        for j in range(i - 1, -1, -1):
            if dist >= 10:
                break
            if hazard(seq[j], c) > dist:
                bad.append((seq[j], c, dist))
            dist += seq[j].states
    return bad


LG = ("dsr", "dsw")
VM = ("vld", "vst", "dma")
SC = ("salu", "barrier", "smem")


class WaitState:
    def __init__(self):
        self.q = {"lg": [], "vm": []}

    def copy(self):
        n = WaitState()
        n.q = {k: list(v) for k, v in self.q.items()}
        return n


def insert_waits(blocks, paths, hoist=True, merge=128):
    waits = {b: {} for b in blocks}
    MAXC = {"lg": 15, "vm": 63}
    tm = {}
    for b, seq in blocks.items():
        tm[b] = []
        tm[b].append(estimate_cycles(seq, tm[b]))

    def run(path):
        changed = False
        q = {"lg": [], "vm": []}
        serial = 0
        base, when = 0, {}
        for bi, b in enumerate(path):
            seq = blocks[b]
            base += tm[path[bi - 1]][-1] if bi else 0
            issued_at = {}
            for i, c in enumerate(seq):
                for k, n in waits[b].get(i, {}).items():
                    q[k] = q[k][len(q[k]) - n:] if 0 < n < len(q[k]) else ([] if n == 0 else q[k])
                if c.kind == "wait":
                    for k, pat in (("lg", r"lgkmcnt\((\d+)\)"), ("vm", r"vmcnt\((\d+)\)")):
                        m = re.search(pat, c.text)
                        if m:
                            n = int(m.group(1))
                            q[k] = q[k][len(q[k]) - n:] if 0 < n < len(q[k]) else ([] if n == 0 else q[k])
                    continue
                if c.kind == "label":
                    continue
                touch = c.uset | c.dset
                for k in ("lg", "vm"):
                    tgt = -1
                    for j, (p, sid) in enumerate(q[k]):
                        if k == "vm" and c.kind == "vld" and "d16_hi" in c.mn and p.dset == c.dset:
                            continue
                        if (p.dset & touch) or (set(p.pub) & set(c.need)):
                            tgt = j
                    if tgt >= 0:
                        pos = i
                        if hoist:
                            j = i - 1
                            if c.kind == "barrier" and j >= 0 and seq[j].kind == "mfma":
                                j -= 1
                            while j >= 0 and seq[j].kind not in ("mfma", "label", "branch"):
                                j -= 1
                            if j >= 0 and seq[j].kind == "mfma" and issued_at.get(q[k][tgt][1], -1) < j and i - j < 12:
                                pos = j + 1
                        while k == "lg" and tgt + 1 < len(q[k]) and when[q[k][tgt + 1][1]] + merge <= base + tm[b][pos]:
                            tgt += 1
                        n = sum(1 for (p, sid) in q[k][tgt + 1:] if issued_at.get(sid, -1) < pos)
                        n = min(n, MAXC[k])
                        w = waits[b].setdefault(pos, {})
                        if w.get(k, 99) > n:
                            w[k] = n
                            changed = True
                        q[k] = q[k][tgt + 1:]
                k = "lg" if c.kind in LG else "vm" if c.kind in VM else None
                if k:
                    serial += 1
                    q[k].append((c, serial))
                    issued_at[serial] = i
                    when[serial] = base + tm[b][i]
        return changed

    for _ in range(10):
        if not any([run(p) for p in paths]):
            break
    else:
        raise RuntimeError("waits did not converge")
    out = {}
    for b, seq in blocks.items():
        o = []
        for i, c in enumerate(seq):
            w = waits[b].get(i)
            if w:
                t = "s_waitcnt"
                if "vm" in w:
                    t += f" vmcnt({w['vm']})"
                if "lg" in w:
                    t += f" lgkmcnt({w['lg']})"
                o.append(Ins(t))
            o.append(c)
        out[b] = o
    return out


def estimate_cycles(seq, times=None):
    t, mf_free, prev, vec_free = 0, 0, None, 0
    lastm = (None, -99)
    for c in seq:
        if times is not None:
            times.append(t)
        if c.kind == "label":
            continue
        if c.kind == "mfma":
            t = max(t, mf_free, vec_free)
            sh = "x16_" in c.mn
            if lastm[0] and not sh:
                t = max(t, lastm[1] + 20)
            ex = max(t, lastm[1] + 20) if (sh and not lastm[0]) else t
            lastm = (sh, ex)
            mf_free, vec_free = ex + 16, t + 8
            t += 4
        elif c.kind in ("valu",) + LG + VM:
            t = max(t, vec_free)
            if c.kind != "valu" and prev is not None and prev[0] == "valu":
                t = max(t, prev[1] + 8)
            if c.kind == "vst":
                mf_free = max(mf_free, t + 4 + 4 * len(c.data))
            t += 4 * c.slots
            if c.kind == "valu":
                prev = ("valu", t)
        else:
            t += 4 * c.slots
        if c.kind in ("mfma",) + LG + VM:
            prev = None
    return t


def lds_cost(o):
    if "cost" in o.attr:
        return o.attr["cost"]
    if o.kind == "dsr":
        return 16 if len(o.defs) > 2 else 8
    return {2: 16, 3: 32, 4: 40, 5: 52}[o.slots]


class Inst:
    __slots__ = ("op", "it", "li", "preds", "idx", "t", "mpos", "nsucc", "prod", "cons", "succ", "npend", "hz", "members")


FLAGS = (("scc", 0), ("vcc", 0))


def schedule(prog, niter, lds_lat=140, look_m=24, look_d=14, look_v=60, lds_slack=0, vm_gap=64, bar_gap=140, fit=True, vm_lat=700, vm_first=0, vm_rate=76, vm_q=99, strict=True):
    byname = {o.name: i for i, o in enumerate(prog)}
    assert len(byname) == len(prog), "duplicate op names"
    insts = []
    lastw, readers = {}, {}
    mcount = 0
    for it in range(niter):
        for li, o in enumerate(prog):
            x = Inst()
            x.op, x.it, x.li, x.idx, x.t = o, it, len(insts), None, None
            x.mpos = mcount
            if o.kind == "mfma":
                mcount += 1
            preds = {}
            x.prod = {}
            x.cons = {}
            for r in o.uses:
                if r in lastw:
                    preds[lastw[r].li] = lastw[r]
                    x.prod[r] = lastw[r]
                    if r in FLAGS:
                        lastw[r].cons.setdefault(r, []).append(x)
            for r in o.defs:
                if r in FLAGS:
                    continue
                if r in lastw:
                    preds[lastw[r].li] = lastw[r]
                for y in readers.get(r, ()):
                    preds[y.li] = y
            for (nm, d) in o.deps:
                j = (it + d) * len(prog) + byname[nm]
                if it + d >= 0:
                    assert j < len(insts), f"dep of {o.name} on later op {nm}"
                    preds[j] = insts[j]
            preds.pop(x.li, None)
            x.preds = list(preds.values())
            for r in o.uses:
                readers.setdefault(r, []).append(x)
            for r in o.defs:
                lastw[r] = x
                readers[r] = []
            insts.append(x)
    import bisect
    chains = {}
    for x in insts:
        x.succ = []
        if x.op.kind == "mfma" and x.op.chain is not None:
            chains.setdefault((x.op.chain, x.it), []).append(x)
    for x in insts:
        x.npend = len(x.preds)
        x.members = chains.get((x.op.chain, x.it), ()) if x.op.kind == "mfma" else ()
        for p in x.preds:
            p.succ.append(x)
    avail = [x for x in insts if x.npend == 0]
    akey = [x.li for x in avail]
    for x in avail:
        x.hz = (0, 0)
    others = [x for x in insts if x.op.kind != "mfma" and not x.op.attr.get("lazy")]
    ptr = dict(o=0, left=len(insts))

    def limits(x):
        n0, t0 = 0, 0
        for p in x.preds:
            n0 = max(n0, p.idx + 1 + hazard(p.op, x.op))
            k = p.op.kind
            tok = set(p.op.pub) & set(x.op.need)
            if k == "dsr" and (p.op.dset & (x.op.uset | x.op.dset) or tok) or k == "dsw" and tok:
                t0 = max(t0, p.t + lds_lat)
            if k in ("vld", "dma") and (p.op.dset & (x.op.uset | x.op.dset) or tok):
                t0 = max(t0, p.nsucc)
            t0 = max(t0, p.t + p.op.attr.get("lat", 0))
        return n0, t0

    out = []
    state = dict(t=0, mf_free=0, vec_free=0, lastvalu=None, n=0, chain=None, free=False, lastm=(None, -99))
    last = dict(lds=-999, vm=-999, vst=-999, vmg=0, nm=0, quiet=0)
    vmq = []

    flag = {r: [] for r in FLAGS}

    def spaced(x, t):
        k = x.op.kind
        if k in LG:
            return last["lds"] - t <= lds_slack
        if k in VM:
            return t >= last["vm"] + last["vmg"] and sum(w for c, w in vmq if c > t) < vm_q
        if k == "barrier":
            return t >= last["vst"] + bar_gap
        if k == "salu":
            return t >= last["quiet"]
        return True

    def nop(t):
        z = Inst()
        z.op, z.it, z.li, z.preds, z.prod = Ins("s_nop 0", name="_nop"), -1, -1, [], {}
        z.idx, z.t = state["n"], t
        state["n"] += 1
        out.append(z)

    def ready(x, t):
        if state["n"] < x.hz[0] or t < x.hz[1] or not spaced(x, t):
            return False
        for r in FLAGS:
            if r in x.op.dset:
                if any(y.idx is None and y is not x for y in flag[r]):
                    return False
                grp = x.cons.get(r, ())
                if any(p.idx is None and p is not x and p not in grp for y in grp for p in y.preds):
                    return False
        return True

    def emit(x, t):
        x.idx, x.t = state["n"], t
        state["n"] += 1
        for r in FLAGS:
            if r in x.op.dset:
                flag[r] = x.cons.get(r, [])
        k = x.op.kind
        if k in LG:
            last["lds"] = max(last["lds"], t) + lds_cost(x.op)
        if k in VM:
            w = x.op.attr.get("w", 1)
            x.nsucc = max(t + vm_lat, vm_first, x.op.attr.get("land", 0), (vmq[-1][0] if vmq else 0) + int(vm_rate * w))
            vmq.append((x.nsucc, w))
            del vmq[:-40]
            last["vm"], last["vmg"] = t, x.op.attr.get("gap", vm_gap)
        if k == "mfma":
            last["nm"] += 1
        if k == "barrier":
            last["quiet"] = t + x.op.attr.get("lat", 0)
        if k == "vst":
            last["vst"] = t
        out.append(x)
        i = bisect.bisect_left(akey, x.li)
        del akey[i], avail[i]
        ptr["left"] -= 1
        for y in x.succ:
            y.npend -= 1
            if y.npend == 0:
                y.hz = limits(y)
                i = bisect.bisect_left(akey, y.li)
                akey.insert(i, y.li)
                avail.insert(i, y)

    stall = 0
    while ptr["left"]:
        t = state["t"]
        win = avail
        while ptr["o"] < len(others) and others[ptr["o"]].idx is not None:
            ptr["o"] += 1
        first_m = last["nm"] if last["nm"] < mcount else 10 ** 9
        first_o = others[ptr["o"]].mpos if ptr["o"] < len(others) else 10 ** 9
        if state["free"]:
            state["free"] = False
            x = next((x for x in win if x.op.kind in SC and x.mpos <= first_m + look_v and ready(x, t)), None)
            if x is not None:
                emit(x, t)
            else:
                nop(t)
            state["t"] = state["vec_free"]
            continue
        if t >= state["mf_free"]:
            cand = None
            for x in win:
                if x.op.kind != "mfma":
                    continue
                if state["lastm"][0] and "x16_" not in x.op.mn and t < state["lastm"][1] + 20:
                    continue
                if state["chain"] is not None:
                    if (x.op.chain, x.it) == state["chain"]:
                        cand = x if ready(x, t) else None
                        break
                    continue
                if x.mpos > first_o + x.op.attr.get("look", look_m):
                    continue
                if ready(x, t) and all(ready_chain(y, x, strict) for y in x.members):
                    cand = x
                    break
            if cand is not None:
                emit(cand, t)
                rest = any(y.idx is None for y in cand.members)
                state["chain"] = (cand.op.chain, cand.it) if rest else None
                sh = "x16_" in cand.op.mn
                ex = max(t, state["lastm"][1] + 20) if (sh and not state["lastm"][0]) else t
                state.update(mf_free=ex + 16, vec_free=t + 8, t=t + 4, lastvalu=None, free=True, lastm=(sh, ex))
                continue
        mem_ok = state["lastvalu"] is None or t >= state["lastvalu"] + 8
        room = state["mf_free"] - t
        cand = None
        if mem_ok:
            ms = [x for x in win if x.op.kind in LG + VM and x.mpos <= first_m + x.op.attr.get("look", look_d) and ready(x, t)]
            if fit and room == 4:
                ms = [x for x in ms if x.op.slots == 1 and x.op.kind != "vst"]
            cand = ms[0] if ms else None
        if cand is None:
            vs = [x for x in win if x.op.kind == "valu" and x.mpos <= first_m + x.op.attr.get("look", look_v) and ready(x, t)]
            if vs and fit and room == 4:
                vs = [x for x in vs if x.op.slots == 1]
            if vs:
                cand = vs[0]
                if fit and room == 8 and cand.op.slots == 1 and not any(y.op.slots == 1 for y in vs[1:]):
                    cand = vs[1] if len(vs) > 1 else cand
        if room <= -8:
            lim = lambda x: x.mpos <= first_m + x.op.attr.get("look", look_d if x.op.kind in LG + VM else look_v)
            y = next((x for x in win if x.op.kind != "mfma" and lim(x) and ready(x, t)), None)
            if y is not None and y.op.kind in LG + VM and not mem_ok:
                z = next((x for x in win if x.op.kind in SC and lim(x) and ready(x, t)), None)
                if z is not None:
                    emit(z, t)
                state["t"] = t + 4
                continue
            if y is not None and y.op.kind in SC:
                emit(y, t)
                state["t"] = t + 4
                continue
        if cand is not None:
            emit(cand, t)
            if cand.op.kind == "vst":
                state["mf_free"] = max(state["mf_free"], t + 4 + 4 * len(cand.op.data))
            state["t"] = t + 4 * cand.op.slots
            state["lastvalu"] = state["t"] if cand.op.kind == "valu" else None
            continue
        x = next((x for x in win if x.op.kind in SC and x.mpos <= first_m + look_v and ready(x, t)), None)
        if x is not None and t >= state["mf_free"]:
            emit(x, t)
            state["t"] = t + 4
            continue
        nop(t)
        stall += 1
        if stall > 20000:
            raise RuntimeError("scheduler deadlock near " + repr([p.op for p in avail[:5]]))
        state["t"] = t + 4
    return out


def ready_chain(y, head, strict):
    if y is head:
        return True
    for p in y.preds:
        if p.idx is None and not (p.op.kind == "mfma" and (p.op.chain, p.it) == (y.op.chain, y.it)):
            if p.op.kind == "dsr" and not (strict and p.op.attr.get("lazy")):
                continue
            return False
    return True


def extract_period(sched, anchor, it):
    def cut(i):
        a = next(k for k, x in enumerate(sched) if x.op.name == anchor and x.it == i)
        b = next(k for k, x in enumerate(sched) if x.op.name == anchor and x.it == i + 1)
        return [(x.op, 0 if x.it < 0 else i - x.it) for x in sched[a:b]], sched[b].t - sched[a].t
    b1, c1 = cut(it)
    b2, c2 = cut(it + 1)
    same = [(o.name, s) for o, s in b1] == [(o.name, s) for o, s in b2]
    return b1, c1, same


def live_masks(ops, vsize, cyclic, persistent=(), liveout=()):
    n = len(ops)
    full = (1 << n) - 1
    acc = {}
    for i, o in enumerate(ops):
        for r in o.uses:
            if r[0].startswith("%"):
                acc.setdefault(r, []).append((i, 0, o))
        for r in o.defs:
            if r[0].startswith("%"):
                acc.setdefault(r, []).append((i, 1, o))
    end = Ins("s_nop 0")
    for r in liveout:
        acc.setdefault(r, []).append((n, 0, end))
    masks = {}

    def span(a, b):
        if b - a + 1 >= n:
            return full
        m = 0
        for k in range(a, b + 1):
            if cyclic:
                m |= 1 << (k % n)
            elif k < n:
                m |= 1 << k
        return m

    for r, lst in acc.items():
        if r[0][1:] in persistent or (cyclic and not any(d for _, d, _ in lst)):
            masks[r] = full
            continue
        m = 0
        seq = lst + ([(i + n, d, o) for i, d, o in lst] if cyclic else [])
        lastdef = None if cyclic else -1
        for (i, d, o) in seq:
            if d:
                lastdef = i
                m |= span(i, i + (9 if o.kind == "mfma" else 0))
            elif lastdef is not None:
                extra = 3 if (o.kind == "mfma" and r in o.srcC) else 2 if (o.kind == "vst" and r in o.data) else 0
                end = i + extra if extra or o.kind == "mfma" or o.mn == "macro" else i - 1
                if end >= lastdef:
                    m |= span(max(lastdef, 0), end)
        masks[r] = m
    for o_i, o in enumerate(ops):
        if o.kind in ("dsr", "vld") and o.defs[0][0].startswith("%"):
            first = None if cyclic else n
            for k in range(1, n):
                p = ops[(o_i + k) % n] if cyclic else (ops[o_i + k] if o_i + k < n else None)
                if p is None:
                    break
                if p.kind != "label" and (p.uset | p.dset) & o.dset:
                    first = o_i + k
                    break
            if first is not None:
                for r in o.defs:
                    masks[r] |= span(o_i, first)
    return masks


def allocate(ops, vsize, pool, cyclic, persistent=(), fixed=None, tries=400, seed=0, liveout=(), preocc=None):
    masks = live_masks(ops, vsize, cyclic, persistent, liveout)
    names = sorted({r[0][1:] for r in masks})
    el = {nm: [masks.get(("%" + nm, i), 0) for i in range(vsize[nm])] for nm in names}
    n = len(ops)
    press = [sum((m >> k) & 1 for m in masks.values()) for k in range(n)]
    poolset = set(pool)
    rnd = random.Random(seed)
    weight = {nm: sum(bin(m).count("1") for m in el[nm]) for nm in names}
    full = (1 << n) - 1
    union = {nm: 0 for nm in names}
    for nm in names:
        for m in el[nm]:
            union[nm] |= m
    peak = press.index(max(press))
    if max(press) > len(pool):
        live = {}
        for r, m in masks.items():
            if (m >> peak) & 1:
                live[r[0]] = live.get(r[0], 0) + 1
        raise RuntimeError(f"pressure {max(press)} at {peak}/{n} ({ops[peak]}): {live}")

    def rot(m, k):
        return ((m >> k) | (m << (n - k))) & full

    boost = {}
    for tr in range(tries):
        if tr % 40 == 0:
            boost = {}
            cut0, jit0 = (peak if tr < 80 else rnd.randrange(n)), rnd.choice((0, 4, 12))
        occ = {p: (preocc or {}).get(p, 0) for p in pool}
        res = {}
        for nm, b in (fixed or {}).items():
            if nm in el:
                res[nm] = b
                for i, m in enumerate(el[nm]):
                    if b + i in occ:
                        if occ[b + i] & m:
                            raise RuntimeError(f"fixed registers overlap: {nm}[{i}] at v{b + i}")
                        occ[b + i] |= m
        cut = cut0 if cyclic else 0
        back = (not cyclic) and (tr // 40) % 2 == 0
        jit = jit0

        def key(nm):
            u = rot(union[nm], cut)
            if back:
                return (1, -u.bit_length() + rnd.uniform(0, jit) - 40 * boost.get(nm, 0))
            if u & 1:
                return (0, -boost.get(nm, 0), -vsize[nm], -weight[nm] * rnd.uniform(0.9, 1.1))
            return (1, (u & -u).bit_length() + rnd.uniform(0, jit) - 40 * boost.get(nm, 0))
        ok = True
        for nm in sorted(names, key=key):
            if nm in res:
                continue
            k = vsize[nm]
            best, bs = None, None
            for b in pool:
                if k > 1 and b % 2:
                    continue
                if all((b + i) in poolset and not (occ[b + i] & el[nm][i]) for i in range(k)):
                    sc = 0
                    for i in range(k):
                        m = el[nm][i]
                        if not m or m == full:
                            continue
                        e = rot(m, cut).bit_length()
                        after = rot(occ[b + i], cut) >> e
                        sc += 0 if back else (after & -after).bit_length() if after else n
                    sc += (n // 8 if (k == 4 and b % 4) else 0) + b * 1e-3
                    if k < 4:
                        nb = [p for p in range(b & ~3, (b & ~3) + 4) if p in occ and not (b <= p < b + k)]
                        sc += sum(0 if occ[p] & union[nm] else n // 4 for p in nb)
                    if bs is None or sc < bs:
                        best, bs = b, sc
            if best is None:
                ok = False
                boost[nm] = boost.get(nm, 0) + 1
                break
            res[nm] = best
            for i in range(k):
                occ[best + i] |= el[nm][i]
        if ok:
            return res, max(press)
    live = {}
    for r, m in masks.items():
        if (m >> peak) & 1 and m != full:
            live[r[0]] = live.get(r[0], 0) + 1
    print(live, boost)
    raise RuntimeError(f"register allocation failed: max pressure {max(press)} at {press.index(max(press))}/{n}, pool {len(pool)}")


def substitute(text, alloc, vsize):
    def f(m):
        nm, a, b = m.group(1), m.group(2), m.group(3)
        base = alloc[nm]
        if a is None:
            lo, hi = base, base + vsize[nm] - 1
        elif b is None:
            lo = hi = base + int(a)
        else:
            lo, hi = base + int(a), base + int(b)
        return f"v{lo}" if lo == hi else f"v[{lo}:{hi}]"
    return _VSUB.sub(f, text)


def check_dataflow(sched, alloc):
    cur = {}
    errs = 0
    for x in sched:
        if x.li < 0:
            continue
        for r in x.op.uses:
            if not r[0].startswith("%") and r in x.prod and cur.get(r) != x.prod[r].li:
                errs += 1
        for r in x.op.defs:
            if not r[0].startswith("%"):
                cur[r] = x.li
        for r in x.op.uses:
            if r[0].startswith("%") and r in x.prod:
                ph = alloc[r[0][1:]] + r[1]
                if cur.get(ph) != (x.prod[r].li, r):
                    errs += 1
        for r in x.op.defs:
            if r[0].startswith("%"):
                cur[alloc[r[0][1:]] + r[1]] = (x.li, r)
    return errs


def prune_nops(seq, cyclic, prefix=()):
    seq = list(seq)
    i = 0
    while i < len(seq):
        if seq[i].name == "_nop":
            trial = seq[:i] + seq[i + 1:]
            n = len(trial)
            if cyclic:
                ctx = [trial[k % n] for k in range(i - 12, i + 12)]
            else:
                ctx = (list(prefix) + trial[:i])[-12:] + trial[i:i + 12]
            if not check_hazards(ctx):
                seq = trial
                continue
        i += 1
    out = []
    for o in seq:
        if o.kind == "nop" and out and out[-1].kind == "nop" and out[-1].slots + o.slots <= 16:
            out[-1] = Ins(f"s_nop {out[-1].slots + o.slots - 1}")
        else:
            out.append(o)
    return out


def live_in(ops):
    seen, res = set(), set()
    for o in ops:
        if o.kind == "label":
            continue
        res |= {r for r in o.uses if r[0].startswith("%") and r not in seen}
        seen |= {r for r in o.defs}
    return res


def reorder(ops, groups):
    import heapq
    pos = {g: i for i, g in enumerate(groups)}
    byname = {o.name: i for i, o in enumerate(ops)}
    succ = [set() for _ in ops]
    npred = [0] * len(ops)
    lastw, readers = {}, {}
    glue = {}
    for i, o in enumerate(ops):
        pr = set()
        for r in o.uses:
            if r in lastw:
                pr.add(lastw[r])
                if r in FLAGS:
                    glue.setdefault(lastw[r], []).append(i)
        for r in o.defs:
            if r in FLAGS:
                continue
            if r in lastw:
                pr.add(lastw[r])
            pr.update(readers.get(r, ()))
        pr.update(byname[n] for n, d in o.deps if d == 0)
        pr.discard(i)
        for p in pr:
            succ[p].add(i)
        npred[i] = len(pr)
        for r in o.uses:
            readers.setdefault(r, []).append(i)
        for r in o.defs:
            lastw[r] = i
            readers[r] = []
    preds = [set() for _ in ops]
    for p, ss in enumerate(succ):
        for i in ss:
            preds[i].add(p)
    for p, cons in glue.items():
        for c in cons:
            for q in preds[c]:
                if q != p and q not in cons and q not in preds[p]:
                    succ[q].add(p)
                    preds[p].add(q)
                    npred[p] += 1
    glued = {c for cons in glue.values() for c in cons}
    key = [(-1 if i in glued else pos[o.attr["act"]], i) for i, o in enumerate(ops)]
    heap = [key[i] for i in range(len(ops)) if npred[i] == 0]
    heapq.heapify(heap)
    out = []
    while heap:
        _, i = heapq.heappop(heap)
        out.append(ops[i])
        for j in succ[i]:
            npred[j] -= 1
            if npred[j] == 0:
                heapq.heappush(heap, key[j])
    assert len(out) == len(ops)
    return out


def pressure(ops, vsize, cyclic, persistent=(), liveout=()):
    masks = live_masks(ops, vsize, cyclic, persistent, liveout)
    n = len(ops)
    cnt = [0] * n
    for m in masks.values():
        b = bin(m)[2:][::-1]
        for k, ch in enumerate(b):
            if ch == "1":
                cnt[k] += 1
    return cnt
```

```python
from asmlib import Ins

RING = 20480
LDS_TOTAL = 163840
E_REC = 336
E_HEAD = 21 * E_REC
L_E = LDS_TOTAL - 4 * E_HEAD
L_LN = 4 * RING
L_EO = L_LN + 4096
L_STG = 3 * RING
L_MEAN = 4608
L_TAB = 2 * RING + 3072

S_X, S_OUT = 24, 28
S_TAU, S_EPSQ, S_EPSL, S_SQ = 40, 41, 42, 43
S_B = 44
S_D = 48
S_T = 53
S_WOFF = 54
S_SO = 56
S_CNT, S_STA, S_STB, S_REM, S_IT, S_N = 61, 62, 63, 64, 65, 66
S_DM = 67
S_TAU2, S_TAU4, S_TINY = 55, 52, 39
NBYTES = 100270464


def wq(j, s): return 4 * (6 * j + s)
def areg(b): return f"a[{b}:{b + 3}]"
def WQ(j, s): return areg(wq(j, s))
def WK(j, s): return areg(72 + wq(j, s))
def WV(j, s): return areg(144 + wq(j, s))
def WO(j, s):
    k = 6 * j + s
    return areg(216 + 4 * k) if k < 10 else f"v[{224 + 4 * (k - 10)}:{224 + 4 * (k - 10) + 3}]"


PERSIST = dict(ONES=4, SEL=4, SELH=4, BT=4, aF0=1, aF1=1, aW1=1, aW2=1, aL=1, aE1=1, aE2=1, aNw=1, aNr=1,
               g0=1, g1=1, g2=1, g3=1, g4=1, GD=1)
for _q in range(3):
    for _k in range(3):
        PERSIST[f"B{_q}{_k}"] = 4
E_Q, E_QH, E_K, E_KH, E_V = 0, 16, 32, 48, 56


class Prog:
    def __init__(self):
        self.vs = dict(PERSIST)
        self.ops = []
        self.stage = 0
        self.auto = 0
        self.pre = ""
        self.act = "G"
        self.ntmp = 0

    def t(self, size=1):
        self.ntmp += 1
        return self.v(f"t{self.pre}{self.ntmp}", size)

    def many(self, text, **kw):
        last = None
        for line in text.strip().split("\n"):
            line = line.split(";")[0].strip()
            if line:
                last = self(line, **kw)
        return last

    def adopt(self, src, items, have=None):
        self.vs.update(src.vs)
        have = have or {(o.name, u) for o, u in items}
        for o, u in items:
            deps = [(f"{n}@{u + d}", 0) for n, d in o.deps if (n, u + d) in have]
            self(o.text, name=f"{o.name}@{u}", stage=o.stage, deps=deps, pub=o.pub, need=o.need,
                 chain=None if o.chain is None else f"{o.chain}@{u}",
                 **{k: v for k, v in o.attr.items() if not (k == "lat" and o.kind == "barrier")})

    def v(self, name, size):
        if name in self.vs:
            assert self.vs[name] == size
        self.vs[name] = size
        return "%" + name

    def __call__(self, text, name=None, **kw):
        if name is None:
            self.auto += 1
            name = f"i{self.pre}{self.auto}"
        kw.setdefault("stage", self.stage)
        kw.setdefault("act", self.act)
        o = Ins(text, self.vs, name=name, **kw)
        if kw.get("as_salu"):
            o.kind = "salu"
        self.ops.append(o)
        return name


M32 = "v_mfma_f32_16x16x32_bf16"
M16 = "v_mfma_f32_16x16x16_bf16"
H32 = "v_mfma_f32_16x16x32_f16"


def frag_reads(P, pre, t, ad="%aF", base=0, **kw):
    names = []
    for s in range(6):
        x = P.v(f"{pre}{t}{s}", 4)
        names.append(P(f"ds_read_b128 {x}, {ad}{s & 1} offset:{base + 1536 * t + 128 * (s >> 1)}", name=f"rd{pre}{t}{s}", **kw))
    return names


def chain(P, acc, W, j, xpre, t, swap=False, **kw):
    a = P.v(acc, 4)
    for s in range(6):
        x = f"%{xpre}{t}{s}"
        A, B = (x, W(j, s)) if swap else (W(j, s), x)
        P(f"{M32} {a}, {A}, {B}, {'0' if s == 0 else a}", name=f"m{acc}{s}", chain=acc, **kw)


def sumsq(P, dst, acc, first, eps):
    d = P.v(dst, 1)
    for r in range(4):
        if first and r == 0:
            P(f"v_fma_f32 {d}, %{acc}[0], %{acc}[0], s{eps}")
        else:
            P(f"v_fmac_f32 {d}, %{acc}[{r}], %{acc}[{r}]")


def scale_pack(P, acc, rs, dst, off, ty="bf16"):
    for k in range(2):
        P(f"v_mul_f32 %{acc}[{2 * k}], %{acc}[{2 * k}], {rs}")
        P(f"v_mul_f32 %{acc}[{2 * k + 1}], %{acc}[{2 * k + 1}], {rs}")
        P(f"v_cvt_pk_{ty}_f32 {dst}[{off + k}], %{acc}[{2 * k}], %{acc}[{2 * k + 1}]")


def pack(P, acc, dst, off, ty="bf16"):
    for k in range(2):
        P(f"v_cvt_pk_{ty}_f32 {dst}[{off + k}], %{acc}[{2 * k}], %{acc}[{2 * k + 1}]")


def qk_chains(P, t, hook=None):
    for nm, W in (("Q", WQ), ("K", WK)):
        for j in range(3):
            chain(P, f"A{nm}{t}{j}", W, j, "X", t)
            if hook:
                hook(nm, j)
            sumsq(P, f"ss{nm}{t}", f"A{nm}{t}{j}", j == 0, S_EPSQ)


def norm_reduce(P, t, nb):
    P(f"v_cvt_pk_bf16_f32 {nb}[2], %ssQ{t}, %ssK{t}")
    d = P.v(f"NR{t}", 4)
    P(f"{M16} {d}, %SEL[0:1], {nb}[2:3], 0", name=f"mNR{t}")
    P(f"v_rsq_f32 {d}[0], {d}[0]")
    P(f"v_rsq_f32 {d}[1], {d}[1]")
    P(f"v_mul_f32 {d}[0], s{S_TAU2}, {d}[0]")
    P(f"v_mul_f32 {d}[1], 0.5, {d}[1]")


def write_names(nm, mode):
    return [nm + k for k in {128: "ab", 64: "abc", 32: "abcdef"}[mode]]


def tile_write(P, lo, hi, t, nm, mode=128, ad="%aW", **kw):
    n = write_names(nm, mode)
    if mode == 128:
        P(f"ds_write_b128 {ad}1, {lo} offset:{1536 * t}", name=n[0], **kw)
        P(f"ds_write_b64 {ad}2, {hi} offset:{1536 * t}", name=n[1], **kw)
    elif mode == 64:
        P(f"ds_write_b64 {ad}1, {lo}[0:1] offset:{1536 * t}", name=n[0], **kw)
        P(f"ds_write_b64 {ad}1, {lo}[2:3] offset:{1536 * t + 8}", name=n[1], **kw)
        P(f"ds_write_b64 {ad}2, {hi} offset:{1536 * t}", name=n[2], **kw)
    else:
        for k in range(4):
            P(f"ds_write_b32 {ad}1, {lo}[{k}] offset:{1536 * t + 4 * k}", name=n[k], **kw)
        for k in range(2):
            P(f"ds_write_b32 {ad}2, {hi}[{k}] offset:{1536 * t + 4 * k}", name=n[4 + k], **kw)
    return n


def xgroup_max(P, m, tmp, op="v_max_f32"):
    for sw in ("v_permlane32_swap_b32", "v_permlane16_swap_b32"):
        P(f"v_mov_b32 {tmp}, {m}")
        P(f"{sw} {tmp}, {m}")
        P(f"{op} {m}, {tmp}, {m}")


def qk_dst(P, nm, t, j):
    if nm == "K":
        return P.v(f"K{t}", 6), 2 * j
    return (P.v(f"Qlo{t}", 4), 2 * j) if j < 2 else (f"%QZ{t}", 2)


def v_dst(t, j):
    return (f"%V1{j}", 2 * t) if t < 2 else (f"%V2{j}", 0)


def h_chain(P, nm, t, j, xpre, nb, hook=None, dst=qk_dst, pre="A"):
    ss = f"{nb}[{2 * (t & 1) + (nm == 'K')}]"
    if xpre:
        chain(P, f"{pre}{nm}{t}{j}", WQ if nm == "Q" else WK, j, xpre, t)
    if hook:
        hook()
    r, o = dst(P, nm, t, j)
    pack(P, f"{pre}{nm}{t}{j}", r, o, "f16")
    for k in range(2):
        if j == 0 and k == 0:
            P(f"v_pk_fma_f16 {ss}, {r}[{o}], {r}[{o}], s{S_TINY}")
        else:
            P(f"v_pk_fmac_f16 {ss}, {r}[{o + k}], {r}[{o + k}]")


def h_reduce(P, tiles, nb, pre="NR"):
    d = P.v(f"{pre}{tiles[0]}", 4)
    P(f"{H32} {d}, %SELH, {nb}, 0", name=f"m{pre}{tiles[0]}")
    st = []
    for i, t in enumerate(tiles):
        st.append(P(f"v_or3_b32 %GD, %GD, {d}[{2 * i}], {d}[{2 * i + 1}]"))
        P(f"v_rsq_f32 {d}[{2 * i}], {d}[{2 * i}]")
        P(f"v_rsq_f32 {d}[{2 * i + 1}], {d}[{2 * i + 1}]")
        P(f"v_mul_f32 {d}[{2 * i}], s{S_TAU4}, {d}[{2 * i}]")
        P(f"v_cvt_pk_f16_f32 {d}[{2 * i}], {d}[{2 * i}], {d}[{2 * i + 1}]")
    return st


def h_scale(P, t, nm, dst=qk_dst, pre="NR"):
    d = f"%{pre}{t & 2}[{2 * (t & 1)}]"
    sel = "op_sel:[0,0] op_sel_hi:[1,0]" if nm == "Q" else "op_sel:[0,1] op_sel_hi:[1,1]"
    for j in range(3):
        r, o = dst(P, nm, t, j)
        for k in range(2):
            P(f"v_pk_mul_f16 {r}[{o + k}], {r}[{o + k}], {d} {sel}")


def loop_program(safe_max=False, opt=None):
    opt = opt or {}
    P = Prog()
    ALW = -9
    P.v("P2", 4)
    for j in range(3):
        P.v(f"V1{j}", 4)
        P.v(f"V2{j}", 4)
    for t in range(3):
        for j in range(3):
            P.v(f"Y{t}{j}", 4)
    stateful = []

    def S(text, **kw):
        n = P(text, stage=ALW, **kw)
        stateful.append(n)
        return n

    vm_names = [f"dma{j}" for j in range(5)] + [f"st{j}" for j in range(5)]
    ofr = [f"rdOF{t}{s}" for t in range(3) for s in range(6)]
    wm = opt.get("wm", 64)
    f16 = not safe_max
    b3 = opt.get("b3", False)
    owr = [n for t in range(3) for n in write_names(f"wO{t}", wm)]
    for t in range(3):
        P.v(f"QZ{t}", 4)
    P.v("EQZ", 4)

    S(f"s_mov_b32 s{S_T}, s{S_B + 3}")
    S(f"s_mov_b32 s{S_B + 3}, s{S_B + 2}")
    S(f"s_mov_b32 s{S_B + 2}, s{S_B + 1}")
    S(f"s_mov_b32 s{S_B + 1}, s{S_B}")
    S(f"s_mov_b32 s{S_B}, s{S_T}")
    S(f"s_sub_u32 s{S_D}, s{S_B}, s{S_B + 2}")
    S(f"v_add_u32 %aF0, s{S_D}, %aF0")
    S(f"v_add_u32 %aF1, s{S_D}, %aF1")
    P.early = list(stateful)
    if b3:
        P("s_waitcnt vmcnt(10)", name="wB3", stage=ALW, as_salu=True, deps=[(n, -1) for n in vm_names])
        P("s_barrier", name="B3", stage=ALW, deps=[("wB3", 0)])
    xbar = ("B3", 0) if b3 else ("B2", -1)

    xr = []
    ywr = []
    first_m = "mAK000" if (f16 and opt.get("kfirst")) else "mAQ000"

    def l_part1():
        P.stage = -2
        for t in range(3):
            for j in range(3):
                sumsq(P, f"ssY{t}", f"Y{t}{j}", j == 0, S_EPSL)
        lp = P.v("LP", 2)
        P(f"v_cvt_pk_bf16_f32 {lp}[0], %ssY0, %ssY1")
        P(f"v_cvt_pk_bf16_f32 {lp}[1], %ssY2, %ssY2")
        P(f"ds_write_b64 %aNw, {lp}", name="wLN", pub=["b1"], deps=[("B2", -1)])
        P("s_barrier", name="B1", stage=ALW, need=["b1"], deps=[("wLN", 0), xbar] + [(n, -1) for n in ofr + owr])
        S(f"s_sub_u32 s{S_D + 1}, s{S_B + 2}, s{S_B + 1}")
        S(f"v_add_u32 %aW1, s{S_D + 1}, %aW1", deps=[(first_m, 0)])
        S(f"v_add_u32 %aW2, s{S_D + 1}, %aW2", deps=[(first_m, 0)])
        for k in range(2):
            P(f"ds_read_b128 {P.v(f'LR{k}', 4)}, %aNr offset:{1024 * k}", name=f"rdLN{k}", deps=[("B1", 0)], pub=["b2"])
        P.stage = 0

    def l_part2():
        P.stage = -2
        d = P.v("LD", 4)
        P(f"{M32} {d}, %SEL, %LR0, 0", name="mLN0", chain="LN")
        P(f"{M32} {d}, %SEL, %LR1, {d}", name="mLN1", chain="LN")
        for t in range(3):
            P(f"v_rsq_f32 {d}[{t}], {d}[{t}]")
        for t in range(3):
            P(f"v_mul_f32 {d}[{t}], s{S_SQ}, {d}[{t}]")
        P.stage = 0

    def l_final(t):
        P.stage = -2
        lo, hi = P.v(f"Ylo{t}", 4), P.v(f"Yhi{t}", 2)
        scale_pack(P, f"Y{t}0", f"%LD[{t}]", lo, 0)
        scale_pack(P, f"Y{t}1", f"%LD[{t}]", lo, 2)
        scale_pack(P, f"Y{t}2", f"%LD[{t}]", hi, 0)
        ywr.extend(tile_write(P, lo, hi, t, f"wY{t}", wm, pub=["b2"]))
        P.stage = 0

    acts = dict(l1=l_part1, l2=l_part2, f0=lambda: l_final(0), f1=lambda: l_final(1), f2=lambda: l_final(2))
    if f16:
        acts.update(n0=lambda: stateful.extend(h_reduce(P, (0, 1), "%NB")), n2=lambda: stateful.extend(h_reduce(P, (2,), "%NB")))
        for t in range(3):
            for nm in "QK":
                acts[f"h{nm}{t}"] = lambda t=t, nm=nm: h_scale(P, t, nm)
        hooks = opt.get("hooks") or {"0Q0": "l1", "0K2": "l2", "0V1": "f0", "1Q1": "f1", "1K1": "f2", "1V0": "n0",
                                     "1V2": "hK0 hQ0", "2Q1": "hK1 hQ1", "2V0": "n2", "2V2": "hK2 hQ2"}
    else:
        hooks = {"0Q0": "l1", "0K2": "l2", "1Q0": "f0", "1K0": "f1", "2Q0": "f2"}

    def hook(t, nm, j):
        for a in hooks.get(f"{t}{nm}{j}", "").split():
            acts[a]()

    for t in range(3):
        xr += frag_reads(P, "X", t, deps=[xbar], pub=["b2"])
        vdst = (lambda j: (f"%V1{j}", 2 * t)) if t < 2 else (lambda j: (f"%V2{j}", 0))
        if f16:
            nb = P.v("NB", 4)
            for nm in ("KQ" if opt.get("kfirst") else "QK"):
                for j in range(3):
                    h_chain(P, nm, t, j, "X", nb, lambda: hook(t, nm, j))
            for j in range(3):
                chain(P, f"AV{t}{j}", WV, j, "X", t, swap=True)
                hook(t, "V", j)
                pack(P, f"AV{t}{j}", *vdst(j))
            continue
        qk_chains(P, t, lambda nm, j: hook(t, nm, j))
        chain(P, f"AV{t}0", WV, 0, "X", t, swap=True)
        norm_reduce(P, t, "%P2")
        pack(P, f"AV{t}0", *vdst(0))
        chain(P, f"AV{t}1", WV, 1, "X", t, swap=True)
        pack(P, f"AV{t}1", *vdst(1))
        chain(P, f"AV{t}2", WV, 2, "X", t, swap=True)
        for nm in (("K", "Q") if t == 2 else ("Q", "K")):
            for j in range(3):
                scale_pack(P, f"A{nm}{t}{j}", f"%NR{t}[{int(nm == 'K')}]", *qk_dst(P, nm, t, j), "f16")
        pack(P, f"AV{t}2", *vdst(2))

    if not b3:
        P("s_waitcnt vmcnt(0)", name="wB2", stage=ALW, as_salu=True, deps=[(n, -1) for n in vm_names] + [(n, 0) for n in xr + ywr])
        ywr.append("wB2")
    P("s_barrier", name="B2", stage=ALW, need=["b2"], deps=[(n, 0) for n in xr + ywr + ["rdLN0", "rdLN1", "B1"]])
    S(f"s_sub_u32 s{S_D + 2}, s{S_B + 1}, s{S_B}")
    S(f"v_add_u32 %aF0, s{S_D + 2}, %aF0")
    S(f"v_add_u32 %aF1, s{S_D + 2}, %aF1")
    S(f"v_add_u32 %aW1, s{S_D}, %aW1")
    S(f"v_add_u32 %aW2, s{S_D}, %aW2")
    S(f"s_sub_u32 s{S_D + 3}, s{S_B + 2}, s{S_B + 3}")
    S(f"v_add_u32 %aL, s{S_D + 3}, %aL")
    S(f"v_add_u32 %aE1, {E_REC}, %aE1")
    S(f"v_add_u32 %aE2, {E_REC}, %aE2")
    if safe_max:
        S(f"v_add_u32 %GD, {E_REC}, %GD")
    for k in (4, 3, 2, 1):
        S(f"s_mov_b32 s{S_SO + k}, s{S_SO + k - 1}")
    S(f"s_add_u32 s{S_SO}, s{S_SO}, s{S_STA}")
    S(f"s_add_u32 s{S_CNT}, s{S_CNT}, 1")
    S(f"s_cmp_eq_u32 s{S_CNT}, 72")
    S(f"s_cselect_b32 s{S_T}, s{S_STB}, 0")
    S(f"s_cselect_b32 s{S_CNT}, 0, s{S_CNT}")
    S(f"s_add_u32 s{S_SO}, s{S_SO}, s{S_T}")
    S(f"s_sub_u32 s{S_REM}, s{S_REM}, 1")
    S(f"s_cmp_gt_i32 s{S_REM}, 0")
    S(f"s_cselect_b32 s{S_X + 2}, {NBYTES}, 0")
    S(f"s_cselect_b32 s{S_SO}, s{S_SO}, 0")
    S(f"s_add_u32 s{S_IT}, s{S_IT}, 1")
    S(f"s_cmp_ge_i32 s{S_IT}, 2")
    S(f"s_cselect_b32 s{S_OUT + 2}, {NBYTES}, 0")
    S(f"s_add_u32 s{S_DM}, s{S_B + 2}, s{S_WOFF}")

    def r_reads(t):
        P.stage = -1
        frag_reads(P, "OF", t, deps=[("B1", 0)], pub=["b1"])
        P.stage = 0

    def r_chain(t, j):
        P.stage = -1
        chain(P, f"Y{t}{j}", WO, j, "OF", t)
        P.stage = 0

    def out_piece(j):
        z = P.v(f"Z{j}", 4)
        P(f"ds_read_b128 {z}, %aL offset:{1024 * j}", name=f"rb{j}", stage=-2, deps=[("B2", 0)], pub=[f"rb{j}"])
        S(f"s_add_u32 m0, s{S_DM}, {1024 * j}")
        prev = [(f"st{j - 1}", 0)] if j else []
        stateful.append(P(f"buffer_load_dwordx4 %g{j}, s[{S_X}:{S_X + 3}], s{S_SO} offen nt lds", name=f"dma{j}", stage=2,
                          need=[f"rb{j}"], deps=[(f"rb{j}", 0)] + prev, lat=opt.get("dmalat", 112)))
        stateful.append(P(f"buffer_store_dwordx4 {z}, %g{j}, s[{S_OUT}:{S_OUT + 3}], s{S_SO + 4} offen {opt.get('stflag', 'sc1')}",
                          name=f"st{j}", stage=-2, deps=[(f"dma{j}", 0)]))

    def e_reads():
        P.v("EK", 6)
        P(f"ds_read_b128 %EK[0:3], %aE1 offset:{E_K}", name="rdEK")
        P(f"ds_read_b64 %EK[4:5], %aE1 offset:{E_KH}", name="rdEKH")

    def eq_reads():
        P(f"ds_read_b128 {P.v('EQ', 4)}, %aE1 offset:{E_Q}", name="rdEQ")
        P(f"ds_read_b64 %EQZ[2:3], %aE1 offset:{E_QH}", name="rdEQH")

    def ev_reads():
        for j in range(3):
            P(f"ds_read_u16 %V2{j}[2], %aE2 offset:{E_V + 8 * j}", name=f"rdEV{j}")

    def s_tile(q, k):
        if k < 3:
            s, kk, c = P.v(f"S{q}{k}", 4), f"%K{k}", f"%B{q}{k}"
        else:
            s, kk, c = P.v(f"SE{q}", 4), "%EK", "%BT"
        P(f"{H32} {s}, {kk}[0:3], %Qlo{q}, {c}", name=f"mS{q}{k}a", chain=f"S{q}{k}")
        P(f"{H32} {s}, {kk}[2:5], %QZ{q}, {s}", name=f"mS{q}{k}b", chain=f"S{q}{k}")

    def s_tiles(q):
        for k in range(4):
            s_tile(q, k)

    def softmax(q):
        p1 = P.v(f"P1{q}", 4)
        regs = [f"%S{q}{k}[{r}]" for k in range(3) for r in range(4)] + [f"%SE{q}[{q}]"]
        if safe_max:
            m, tmp = P.v(f"mx{q}", 1), P.v(f"mt{q}", 1)
            P(f"v_max3_f32 {m}, {regs[0]}, {regs[1]}, {regs[2]}")
            for k in range(3, 13, 2):
                P(f"v_max3_f32 {m}, {m}, {regs[k]}, {regs[k + 1]}")
            xgroup_max(P, m, tmp)
            for r in regs:
                P(f"v_sub_f32 {r}, {r}, {m}")
        for k in range(3):
            for r in range(4):
                P(f"v_exp_f32 %S{q}{k}[{r}], %S{q}{k}[{r}]")
            pack(P, f"S{q}{k}", p1 if k < 2 else "%P2", 2 * k if k < 2 else 0)
        P(f"v_exp_f32 {regs[12]}, {regs[12]}")
        P(f"v_cvt_pk_bf16_f32 %P2[2], {regs[12]}, 0")

    def pv(q):
        sm = P.v(f"SM{q}", 4)
        P(f"{M32} {sm}, %ONES, %P1{q}, 0", name=f"mSM{q}a", chain=f"SM{q}")
        P(f"{M32} {sm}, %ONES, %P2, {sm}", name=f"mSM{q}b", chain=f"SM{q}")
        for j in range(3):
            o = P.v(f"O{q}{j}", 4)
            P(f"{M32} {o}, %V1{j}, %P1{q}, 0", name=f"mO{q}{j}a", chain=f"O{q}{j}")
            P(f"{M32} {o}, %V2{j}, %P2, {o}", name=f"mO{q}{j}b", chain=f"O{q}{j}")

    def o_out(q):
        P(f"v_rcp_f32 %SM{q}[0], %SM{q}[0]")
        lo, hi = P.v(f"Olo{q}", 4), P.v(f"Ohi{q}", 2)
        scale_pack(P, f"O{q}0", f"%SM{q}[0]", lo, 0)
        scale_pack(P, f"O{q}1", f"%SM{q}[0]", lo, 2)
        scale_pack(P, f"O{q}2", f"%SM{q}[0]", hi, 0)
        tile_write(P, lo, hi, q, f"wO{q}", wm, pub=["b1"], deps=[("B2", 0)])

    nT = 4 if safe_max else 3

    def eq_logits():
        eq_reads()
        for k in range(nT):
            kk = f"%K{k}" if k < 3 else "%EK"
            P(f"{H32} {P.v(f'T{k}', 4)}, %EQ, {kk}[0:3], %BT", name=f"mT{k}a", chain=f"T{k}")
            P(f"{H32} %T{k}, %EQZ, {kk}[2:5], %T{k}", name=f"mT{k}b", chain=f"T{k}")

    def eq_softmax():
        for k in range(1, nT):
            P(f"v_mov_b32_dpp %T0[3], %T{k}[3] quad_perm:[0,1,2,3] row_mask:0x{1 << k:x} bank_mask:0xf")
        if safe_max:
            m, tmp = P.v("mxE", 1), P.v("mtE", 1)
            P(f"v_mov_b32 {m}, %T0[3]")
            for sh in (8, 4, 2, 1):
                P(f"v_max_f32_dpp {m}, {m}, {m} row_ror:{sh} row_mask:0xf bank_mask:0xf")
            xgroup_max(P, m, tmp)
            P(f"v_sub_f32 %T0[3], %T0[3], {m}")
        P("v_exp_f32 %T0[3], %T0[3]")
        P("v_cvt_pk_bf16_f32 %T0[3], %T0[3], %T0[3]")
        stateful.append(P(f"ds_write_b16 {'%GD' if safe_max else '%aE2'}, %T0[3]", name="wPE", deps=[("rdEQ", 0), ("rdEQH", 0)]))
        P(f"ds_read_b128 {P.v('PE1', 4)}, %aE1", name="rdPE1", deps=[("wPE", 0)], look=99)
        P(f"ds_read_b128 {P.v('PE2', 4)}, %aE1 offset:16", name="rdPE2", deps=[("wPE", 0)], look=99)

    def eq_pv():
        for j in range(3):
            o = P.v(f"U{j}", 4)
            P(f"{M32} {o}, %PE1, %V1{j}, 0", name=f"mU{j}a", chain=f"U{j}")
            P(f"{M32} {o}, %PE2, %V2{j}, {o}", name=f"mU{j}b", chain=f"U{j}")

    def eq_out():
        for k in range(1, 3):
            P(f"v_mov_b32_dpp %U0[3], %U{k}[3] quad_perm:[0,1,2,3] row_mask:0x{1 << k:x} bank_mask:0xf")
        P("v_cvt_pk_bf16_f32 %U0[3], %U0[3], %U0[3]")
        stateful.append(P(f"ds_write_b16 %aE2, %U0[3] offset:{E_V}", name="wOE", deps=[(f"rdEV{j}", 0) for j in range(3)]))

    seq = opt.get("aseq") or ("o0 o1 rr0 r00 o2 r01 er o3 r02 s0 ev x0 o4 eql eqs rr1 r10 s1 pv0 x1 oo0 r11 eqp eqo r12 "
                              "s2 pv1 x2 oo1 rr2 r20 r21 r22 pv2 oo2").split()
    if safe_max:
        seq = ("rr0 r00 r01 er o0 r02 s0 ev x0 eql eqs o1 rr1 r10 pv0 s1 oo0 x1 o2 r11 eqp eqo r12 pv1 s2 oo1 x2 o3 rr2 r20 o4 "
               "r21 r22 pv2 oo2").split()
    for a in seq:
        P.act = a
        if a.startswith("rr"): r_reads(int(a[2]))
        elif a[0] == "r": r_chain(int(a[1]), int(a[2]))
        elif a == "er": e_reads()
        elif a == "ev": ev_reads()
        elif a == "eql": eq_logits()
        elif a == "eqs": eq_softmax()
        elif a == "eqp": eq_pv()
        elif a == "eqo": eq_out()
        elif a.startswith("oo"): o_out(int(a[2]))
        elif a[0] == "o": out_piece(int(a[1]))
        elif a[0] == "s": s_tiles(int(a[1]))
        elif a[0] == "x": softmax(int(a[1]))
        elif a.startswith("pv"): pv(int(a[2]))
        else: raise ValueError(a)
    anchor = next(o for o in P.ops if o.kind == "mfma")
    for o in P.ops:
        if o.kind == "barrier" and opt.get("stag") and not safe_max:
            o.attr["lat"] = 16 * max(opt["stag"]) + 12
    P.anchor = anchor.name
    P.stateful = stateful
    anchor.deps += [(n, -1) for n in stateful + ["B1", "B2"]]
    return P
```

```python
import sys
import struct
from asmlib import *
from body import *

KNAME = "standalone__window_attn_swin_v2__vision_kernel"
PITCH = 196224
LOG2E = 1.4426950408889634
S_W, S_WOD = 32, 76
S_H, S_SO0, S_CNT0, S_NW, S_R0, S_C0, S_MASKW = 68, 69, 70, 71, 72, 73, 74
OOB = 0x40000000
LS_FAST = 0x406C
POOL = list(range(0, 224))
VERB = 'verb' in sys.argv
ZERO_ELEMS = [("P2", 3), ("V20", 3), ("V21", 3), ("V22", 3)] + [(n, k) for n in ("QZ0", "QZ1", "QZ2", "EQZ") for k in range(2)]


def slot(u):
    return 12288 * (u % 6)


TOP = {}
_r = 224
for _n in [n for n in PERSIST if PERSIST[n] == 4] + ["P2", "V20", "V21", "V22", "QZ0", "QZ1", "QZ2", "EQZ"]:
    _r -= 4
    TOP[_n] = _r
for _n in [n for n in PERSIST if PERSIST[n] == 1]:
    _r -= 1
    TOP[_n] = _r


HSCHED = dict(look_m=24, look_d=14, look_v=80, vm_gap=32, vm_first=1200, vm_rate=80, vm_q=9)
TSCHED = dict(look_m=40, look_d=16, look_v=80, lds_slack=16)
HPRIO = "G u0 cp wa tr Q0 ba Q1 co Q2 ad Q3 u1 Q4 Q5 ga2 u2 K0 K1 K2 bx kp0 en0 kp3 K3 K5 ga1 kp1 kp2 K4 x1 gn0 gV2 ga0 eV0 gn2 kp4 mk s0 er st x0 eqs gV0 eV1 eql en1 s1 B2 gV1 x1s wm ev pv0 oo0 eqp s2 eqo c0 o x2 pv1 c2 c1 c3 oo1 end c4 c5 pv2 oo2"
TPRIO = None


def f32(x):
    return "0x%08x" % struct.unpack("<I", struct.pack("<f", x))[0]


def lane_ids(P):
    ln, c, g = P.v("LANE", 1), P.v("C", 1), P.v("G", 1)
    P.many(f"""
    v_mbcnt_lo_u32_b32 {ln}, -1, 0
    v_mbcnt_hi_u32_b32 {ln}, -1, {ln}
    v_and_b32 {c}, 15, {ln}
    v_lshrrev_b32 {g}, 4, {ln}""")
    return ln, c, g


def head_program(L, body, safe, opt):
    P = Prog()
    P.pre = "h"
    P.vs.update(L.vs)
    T = P.t
    LZ = dict(look=999, lazy=True)
    P("s_load_dwordx16 s[4:19], s[0:1], 0", lat=opt.get("klat", 120))
    P("s_load_dwordx4 s[20:23], s[0:1], 64", lat=opt.get("klat", 120))
    LANE, C, G = P.v("LANE", 1), P.v("C", 1), P.v("G", 1)
    l128 = T()
    sm = dict(w=0.2, gap=4)
    P.many(f"""
    v_mbcnt_lo_u32_b32 {LANE}, -1, 0
    v_mbcnt_hi_u32_b32 {LANE}, -1, {LANE}
    s_lshr_b32 s88, s2, 3
    s_lshl2_add_u32 s88, s88, s{S_H}
    v_lshlrev_b32 {l128}, 7, {LANE}""")
    if not safe:
        a = T()
        P.many(f"""
        s_getpc_b64 s[80:81]
        s_lshl_b32 s84, s88, 8
        v_and_b32 {a}, 128, {l128}
        v_add_u32 {a}, s84, {a}
        v_min_u32 {a}, L_slow-{KNAME}-256, {a}""")
        P(f"global_load_dword a255, {a}, s[80:81]", **sm)
    pa, pb = T(), T()
    P.many(f"""
    s_mul_i32 s89, s88, 576
    s_mul_i32 s88, s88, 1728
    v_min_u32 {pa}, {13 * 128}, {l128}
    v_min_u32 {pb}, {4 * 128}, {l128}
    s_mov_b32 s{S_W + 2}, 221184
    s_mov_b32 s{S_W + 3}, 0x20000
    s_mov_b32 s{S_WOD + 2}, 73728
    s_mov_b32 s{S_WOD + 3}, 0x20000""")
    c4, c3 = T(), T()
    arc, aw1, aw2 = T(), T(), T()
    P.many(f"""
    v_and_b32 {C}, 15, {LANE}
    v_lshrrev_b32 {G}, 4, {LANE}
    v_lshrrev_b32 {c4}, 2, {C}
    v_and_b32 {c3}, 3, {C}
    s_mul_i32 s87, s{S_H}, 192
    v_mad_u32_u24 {arc}, {C}, 12, s87
    v_lshlrev_b32 {aw1}, 1, {C}
    v_lshlrev_b32 {aw2}, 1, {c4}
    v_lshl_add_u32 {aw2}, {G}, 5, {aw2}
    s_movk_i32 s86, 384
    s_mov_b32 s{S_X + 2}, {NBYTES}
    s_mov_b32 s{S_X + 3}, 0x20000
    s_mov_b32 s{S_OUT + 2}, 0
    s_mov_b32 s{S_OUT + 3}, 0x20000""")
    P(";! s[4:23] | s[4:23]\n    s_waitcnt lgkmcnt(0)", name="kw", as_salu=True, cost=1)
    P.many(f"""
    s_mov_b32 s{S_W}, s6
    s_mov_b32 s{S_W + 1}, s7
    s_mov_b32 s{S_WOD}, s8
    s_mov_b32 s{S_WOD + 1}, s9""")
    P(f"buffer_load_dword a254, {pa}, s[{S_W}:{S_W + 3}], s88 offen", w=1.5, gap=4)
    P(f"buffer_load_dword a253, {pb}, s[{S_WOD}:{S_WOD + 3}], s89 offen", w=0.5, gap=4)
    P("s_load_dwordx2 s[82:83], s[10:11], 0", lat=800)
    P("s_movk_i32 s18, 676")
    P("s_mov_b32 s19, 0x20000")
    P.many(f"""
    s_mov_b32 s{S_X}, s4
    s_mov_b32 s{S_X + 1}, s5""")
    P.many(f"""
    s_mov_b32 s{S_X}, s4
    s_mov_b32 s{S_X + 1}, s5""")
    P.many(f"""
    s_mul_i32 s96, s{S_H}, 288
    s_and_b32 s97, s{S_H}, 1
    s_lshl_b32 s97, s97, 2
    s_mov_b32 s98, {PITCH - 2688}
    s_mov_b32 s99, {3 * PITCH + 3 * 384}""")
    tok, row, gsw = [], [], []
    g0 = T()
    P(f"v_add_u32 {g0}, s96, {LANE}")
    for j in range(5):
        i, t, r, k = (T() if j else g0), T(), T(), T()
        if j:
            P(f"v_add_u32 {i}, {64 * j}, {g0}")
        P.many(f"""
        v_mul_u32_u24 {t}, 2731, {i}
        v_mul_u32_u24 {r}, 6242, {i}
        v_lshrrev_b32 {t}, 16, {t}
        v_lshrrev_b32 {r}, 20, {r}
        v_and_or_b32 {k}, {t}, 3, s97
        v_xor_b32 {k}, {i}, {k}
        v_lshl_add_u32 %g{j}, {k}, 4, s99
        v_mad_u32_u24 %g{j}, {r}, s98, %g{j}""")
        tok.append(t)
        row.append(r)
        gsw.append(k)
    P.many(f"""
    s_mul_i32 s93, s2, 21
    s_mul_i32 s94, s93, 58255
    s_lshr_b32 s94, s94, 22
    s_mul_i32 s95, s94, 72
    s_sub_u32 s{S_CNT0}, s93, s95
    s_mul_i32 s94, s94, {7 * PITCH - 72 * 7 * 384}
    s_mul_i32 s95, s93, {7 * 384}
    s_add_u32 s{S_SO0}, s94, s95
    s_movk_i32 s{S_STA}, {7 * 384}
    s_movk_i32 s{S_NW}, 21
    s_mov_b32 s93, {9 * PITCH + 9 * 384}
    s_mul_i32 s{S_WOFF}, s{S_H}, 5120""")
    tag = "S" if safe else "F"
    gl = ", ".join(f"%g{j}" for j in range(5))
    sl = f"s{S_SO0}, s{S_CNT0}, s{S_NW}, s{S_STA}, s93"
    x = T(2)
    blk = f"""L_bnd{tag}:
    s_movk_i32 s{S_NW}, 18
    s_cmp_eq_u32 s2, 246
    s_cbranch_scc1 L_bndr{tag}
    s_mov_b32 s{S_CNT0}, 0
    s_mov_b32 s{S_MASKW}, 0
    s_cmp_lt_u32 s2, 251
    s_cbranch_scc1 L_bndc{tag}
    s_sub_u32 s94, s2, 251
    s_mul_i32 s{S_SO0}, s94, {18 * 7 * 384}
    s_mov_b32 s{S_MASKW}, {72 * 73 * 4802}
    s_sub_u32 s93, s93, {7 * PITCH}
"""
    for j in range(5):
        blk += f"""    v_cmp_le_u32 vcc, 4, {row[j]}
    v_add_u32 {x}[0], {504 * PITCH}, %g{j}
    v_subrev_u32 {x}[1], {7 * PITCH}, %g{j}
    v_cndmask_b32 %g{j}, {x}[0], {x}[1], vcc
"""
    blk += f"""    s_cmp_lt_u32 s2, 255
    s_cbranch_scc1 L_bndr{tag}
L_bndc{tag}:
    s_sub_u32 s94, s2, 247
    s_mul_i32 s{S_SO0}, s94, {18 * 7 * PITCH}
    s_mov_b32 s{S_STA}, {7 * PITCH}
    s_add_u32 s{S_MASKW}, s{S_MASKW}, {72 * 4802}
    s_sub_u32 s93, s93, {7 * 384}
"""
    for j in range(5):
        blk += f"""    v_mad_i32_i24 {x}[0], {row[j]}, -7, {tok[j]}
    v_cmp_le_u32 vcc, 4, {x}[0]
    v_add_u32 {x}[0], {504 * 384}, %g{j}
    v_subrev_u32 {x}[1], {7 * 384}, %g{j}
    v_cndmask_b32 %g{j}, {x}[0], {x}[1], vcc
"""
    blk += f"""    s_cmp_eq_u32 s2, 255
    s_cselect_b32 s{S_STA}, 0, s{S_STA}
    s_cselect_b32 s{S_SO0}, 0, s{S_SO0}
    s_cselect_b32 s{S_NW}, 2, s{S_NW}
    s_branch L_bndr{tag}
"""
    P(f";! {gl}, {sl}, {x}, s94, s{S_MASKW}, scc, vcc | {gl}, {sl}, {', '.join(tok + row)}\n"
      f"    s_cmp_ge_u32 s2, 246\n    s_cbranch_scc1 L_bnd{tag}\nL_bndr{tag}:\n;!OUT\n{blk}", name="bnd", as_salu=True)
    oob = T()
    P(f"v_lshl_or_b32 {oob}, {LANE}, 4, 2.0")
    x0, xdma = [], []
    xl = dict(w=opt.get("xw", 0.6), land=opt.get("xland", 2000), **LZ)
    for j in range(5):
        if j == 4:
            P.many(f"""
            v_cmp_gt_u32 vcc, 32, {LANE}
            v_cndmask_b32 %g4, {oob}, %g4, vcc""")
        P(f"s_add_u32 m0, s{S_WOFF}, {1024 * j}", **LZ)
        x0.append(P(f"buffer_load_dwordx4 %g{j}, s[{S_X}:{S_X + 3}], s{S_SO0} offen nt lds", pub=["x0"], **xl))
    P.many(f"""
    s_mov_b32 s{S_STB}, {7 * PITCH - 72 * 7 * 384}
    s_sub_u32 s{S_N}, s{S_NW}, 1
    s_add_u32 s93, s93, s{S_SO0}
    s_sub_u32 s94, 72, s{S_CNT0}
    s_mul_i32 s95, s{S_H}, -44
    s_movk_i32 s99, -24""")
    EO = P.v("EO", 4)
    for j in range(3):
        w, a, wc, e = T(), T(), T(), T()
        P.many(f"""
        v_and_b32 {a}, -4, {tok[j]}
        v_mad_u32_u24 {w}, {a}, 3, {tok[j]}
        v_add_u32 {w}, s95, {w}
        v_mad_i32_i24 {e}, {tok[j]}, s99, {gsw[j]}
        v_min_u32 {wc}, s{S_N}, {w}
        v_lshl_add_u32 {e}, {e}, 4, s93
        v_mad_u32_u24 {e}, {wc}, s{S_STA}, {e}
        v_add_u32 {a}, s{S_STB}, {e}
        v_cmp_le_u32 vcc, s94, {wc}
        v_cndmask_b32 {e}, {e}, {a}, vcc""")
        P(f"s_add_u32 m0, s{S_WOFF}, {2 * RING + 1024 * j}", **LZ)
        xdma.append(P(f"buffer_load_dwordx4 {e}, s[{S_X}:{S_X + 3}], 0 offen nt lds", pub=["xe"], **xl))
        P.many(f"""
        v_cmp_gt_u32 vcc, s{S_NW}, {w}
        v_cndmask_b32 {EO}[{j}], {oob}, {e}, vcc""")
    vo, vrow = {384: [], 1152: []}, []
    P.many(f"""
    s_mul_i32 s85, s{S_H}, 96
    s_sub_u32 s100, s85, 1024
    s_sub_u32 s87, s85, 2048
    s_movk_i32 s91, 1152""")
    for j in range(3):
        i, r, u, b = (T() if j else LANE), T(), T(), T()
        if j:
            P(f"v_add_u32 {i}, {64 * j}, {LANE}")
        P.many(f"""
        v_mul_u32_u24 {r}, 10923, {i}
        v_lshrrev_b32 {b}, 17, {r}
        v_lshrrev_b32 {r}, 16, {r}
        v_mad_i32_i24 {u}, {r}, -6, {i}
        v_bitop3_b32 {b}, {b}, {r}, 4 bitop3:0x28
        v_lshl_add_u32 {u}, {u}, 4, s{(85, 100, 87)[j]}
        v_mul_u32_u24 {b}, 3, {b}
        v_xor_b32 {r}, {r}, {b}
        v_mad_u32_u24 {b}, {r}, s91, {u}""")
        vrow.append((r, u))
        vo[1152].append(b)
    P.many(f"""
    s_mul_i32 s90, s{S_H}, 3072
    s_add_u32 s90, s90, {L_STG}""")
    for j in range(3):
        vo[384].append(T())
        P(f"v_mad_u32_u24 {vo[384][j]}, {vrow[j][0]}, s86, {vrow[j][1]}")
    rd, dw = {}, {}

    def stage(u):
        srd, ld, so = (S_WOD, 384, 32 * (u - 18) * 384) if u >= 18 else (S_W, 1152, 32 * (u % 6) * 1152 + 384 * (u // 6))
        deps = [(n, 0) for n in rd.get(u - 6, [])]
        P(f"s_add_u32 m0, s90, {slot(u)}", deps=deps, **LZ)
        P(f"s_mov_b32 s92, {so}", deps=deps, **LZ)
        dw[u] = [P(f"buffer_load_dwordx4 {vo[ld][j]}, s[{srd}:{srd + 3}], s92 offen offset:{1024 * j} lds", name=f"dw{u}_{j}",
                   pub=[f"c{u}"], need=[f"t{u - 6}"], deps=deps, lat=opt.get("m0lat", 0) if u > 2 else 0, **LZ) for j in range(3)]

    for u in range(6):
        stage(u)
    P.act = "co"
    one = T()
    a = T()
    P(f"v_mov_b32 {a}, 0x3f803f80")
    P(f"v_cmp_eq_u32 vcc, 0, {c3}")
    for k in range(4):
        P(f"v_cndmask_b32 %ONES[{k}], 0, {a}, vcc")
    a, b = T(), T()
    P.many(f"""
    v_and_b32 {a}, 1, {LANE}
    v_lshlrev_b32 {a}, 4, {a}
    v_mov_b32 {b}, 0x3f80
    v_lshlrev_b32 {one}, {a}, {b}
    v_cmp_gt_u32 vcc, 2, {c3}
    v_cndmask_b32 %SEL[0], 0, {one}, vcc
    v_cndmask_b32 %SEL[2], 0, {one}, vcc
    v_cmp_le_u32 vcc, 2, {c3}
    v_cndmask_b32 %SEL[1], 0, {one}, vcc
    v_cndmask_b32 %SEL[3], 0, {one}, vcc""")
    MS = T(2)
    P.many(f"""
    v_cmp_eq_u32 vcc, {G}, {c4}
    v_cndmask_b32 {MS}[0], 0, %SEL[0], vcc
    v_cndmask_b32 {MS}[1], 0, %SEL[1], vcc""")
    if not safe:
        four = T()
        P(f"v_mov_b32 {four}, 0x44004400")
        for k in range(4):
            P(f"v_cmp_eq_u32 vcc, {k}, {c3}")
            P(f"v_cndmask_b32 %SELH[{k}], 0, {four}, vcc")
    for n, k in ZERO_ELEMS:
        P(f"v_mov_b32 %{n}[{k}], 0")
    P.act = "tr"
    tr = [T(), T()]
    a, b = T(), T()
    P.many(f"""
    v_lshrrev_b32 {b}, 1, {G}
    v_lshl_add_u32 {a}, {G}, 2, {c4}
    v_lshl_add_u32 {a}, {b}, 3, {a}
    v_mul_u32_u24 {a}, 96, {a}
    v_add_u32 {a}, s90, {a}
    v_lshl_add_u32 {tr[0]}, {c3}, 4, {a}
    v_lshl_add_u32 {tr[1]}, {c3}, 3, {a}""")
    tq0, tk0, ae = T(), T(), T()
    aq, ak = [T() for _ in range(3)], [T() for _ in range(12)]

    def bias_addr():
        P.many(f"""
        s_add_u32 s101, s{S_WOFF}, {L_TAB}""")

        def a4(t4):
            i = T()
            P.many(f"""
            v_mul_u32_u24 {i}, 37, {t4}
            v_lshrrev_b32 {i}, 10, {i}
            v_mad_u32_u24 {t4}, {i}, 24, {t4}""")

        P.many(f"""
        v_mul_u32_u24 {tq0}, 48, {c4}
        v_lshl_add_u32 {tq0}, {c3}, 2, {tq0}
        v_mul_u32_u24 {tk0}, 48, {G}""")
        for q in range(3):
            P(f"v_add_u32 {aq[q]}, {16 * q}, {tq0}")
            a4(aq[q])
            P(f"v_add_u32 {aq[q]}, s101, {aq[q]}")
        for k in range(12):
            P(f"v_add_u32 {ak[k]}, {4 * k}, {tk0}")
            a4(ak[k])
        P(f"v_lshl_add_u32 {ae}, {G}, 4, {tq0}")
        a4(ae)
        a = T()
        P.many(f"""
        v_mov_b32 {a}, {4 * 84}
        v_cmp_gt_u32 vcc, 3, {G}
        v_cndmask_b32 {ae}, {a}, {ae}, vcc
        v_sub_u32 {ae}, s101, {ae}""")

    P.act = "cp"
    chk = "" if safe else f"""
    s_sext_i32_i16 s84, s82
    s_ashr_i32 s85, s82, 16
    s_max_i32 s84, s84, s85
    s_sext_i32_i16 s85, s83
    s_max_i32 s84, s84, s85
    s_ashr_i32 s85, s83, 16
    s_max_i32 s84, s84, s85
    s_cmp_gt_i32 s84, {-99999 if opt.get('force_slow') else LS_FAST}
    s_cbranch_scc1 L_slow"""
    P(";! s[82:85], scc | s[82:85]\n    s_waitcnt lgkmcnt(0)" + chk, name="lsw", as_salu=True, cost=1)
    P(f"s_mov_b32 s{S_OUT}, s22")
    P(f"s_mov_b32 s{S_OUT + 1}, s23")
    a = T()
    P.many(f"""
    s_lshl_b32 s84, s{S_H}, 4
    s_lshr_b64 s[82:83], s[82:83], s84
    s_lshl_b32 s82, s82, 16
    v_mov_b32 {a}, s82
    v_min_f32 {a}, {f32(4.59375)}, {a}
    v_max_f32 {a}, {f32(-100.0)}, {a}
    v_mul_f32 {a}, {f32(LOG2E)}, {a}
    v_exp_f32 {a}, {a}
    v_cvt_pk_bf16_f32 {a}, {a}, {a}
    v_lshlrev_b32 {a}, 16, {a}
    v_mul_f32 {a}, {f32(2 * LOG2E)}, {a}
    v_readfirstlane_b32 s{S_TAU2}, {a}
    v_add_f32 {a}, {a}, {a}
    v_readfirstlane_b32 s{S_TAU4}, {a}
    s_mov_b32 s{S_EPSQ}, {f32(0.25e-12)}
    s_mov_b32 s{S_EPSL}, {f32(192 * 1e-5 / 16)}
    s_mov_b32 s{S_SQ}, {f32(192 ** 0.5)}
    s_mov_b32 s{S_TINY}, 0x00010001""")
    atab, m8 = T(), T()
    P.many(f"""
    v_lshl_or_b32 {A1}[0], {A1}[1], 16, {A1}[0]
    v_lshl_or_b32 {A2}[0], {hi16[0]}, 16, {A2}[0]
    v_lshl_or_b32 {A2}[1], {hi16[1]}, 16, {A2}[1]
    v_cmp_gt_u32 vcc, 16, {LANE}
    v_cndmask_b32 {A1}[3], 0, {A1}[0], vcc
    v_cndmask_b32 {A1}[0], 0, {A1}[0], vcc
    v_mov_b32 {A1}[1], 0
    v_mov_b32 {A1}[2], 0
    v_mov_b32 {B1}[3], 0
    v_mul_u32_u24 {atab}, 5120, {G}
    v_add_u32 {atab}, {arc}, {atab}
    s_mov_b32 s84, {f32(16 * LOG2E)}
    v_mov_b32 {m8}, {f32(-8 * LOG2E)}""")
    pre2 = []
    D1, D2 = [T(4) for _ in range(3)], [T(4) for _ in range(3)]
    for k in range(3):
        P(f"{M16} {D1[k]}, {A1}[{2 * (k & 1)}:{2 * (k & 1) + 1}], {B1}[{k & 2}:{(k & 2) + 1}], 0")
    for k in range(3):
        for r in range(4):
            P(f"v_max_f32 {D1[k]}[{r}], 0, {D1[k]}[{r}]")
        pack(P, D1[k][1:], D1[k], 0)
        P(f"{M16} {D2[k]}, {A2}, {D1[k]}[0:1], 0")
    for k in range(3):
        z = f"{D2[k]}[0]"
        P.many(f"""
        v_cvt_pk_bf16_f32 {z}, {z}, {z}
        v_lshlrev_b32 {z}, 16, {z}
        v_mul_f32 {z}, {f32(-LOG2E)}, {z}
        v_exp_f32 {z}, {z}
        v_add_f32 {z}, 1.0, {z}
        v_rcp_f32 {z}, {z}
        v_cvt_pk_bf16_f32 {z}, {z}, {z}
        v_lshlrev_b32 {z}, 16, {z}
        v_fma_f32 {z}, {z}, s84, {m8}""")
        pre2.append(P(f"ds_write_b32 {atab}, {z} offset:{L_TAB + 4 * k}", pub=["w2"]))
    P("s_barrier", name="Bx", need=["w2"], deps=[(n, 0) for n in pre2 + ["lsw"]])
    wrd = []
    W = {}

    def wo_addr():
        a = T()
        W.update(own=[T(), T()], am=[T(), T()], amw=T(), amr=T())
        P.many(f"""
        v_and_b32 {a}, 8, {C}
        v_add_u32 {a}, {a}, {C}
        v_mul_u32_u24 {a}, 96, {a}
        v_add_u32 {a}, s90, {a}
        v_lshl_add_u32 {W['own'][0]}, {G}, 4, {a}
        v_lshl_add_u32 {W['own'][1]}, {G}, 3, {a}
        s_lshr_b32 s93, s{S_H}, 1
        s_mul_i32 s93, s93, {3 * 12288 - 2 * 3072}
        s_and_b32 s94, s{S_H}, 1
        s_mul_i32 s94, s94, {768 - 3072}
        s_add_u32 s93, s93, s94
        v_add_u32 {W['am'][0]}, s93, {W['own'][0]}
        v_add_u32 {W['am'][1]}, s93, {W['own'][1]}
        v_lshlrev_b32 {W['amr']}, 4, {G}
        v_add_u32 {W['amr']}, {L_MEAN}, {W['amr']}
        s_lshr_b32 s93, s{S_H}, 1
        s_mul_i32 s93, s93, 5120
        s_lshl_b32 s94, s97, 4
        s_add_u32 s93, s93, s94
        v_add_u32 {W['amw']}, s93, {W['amr']}
        v_cmp_eq_u32 vcc, 0, {C}
        v_cndmask_b32 {W['amw']}, {oob}, {W['amw']}, vcc""")

    def wo_means():
        P("s_barrier", name="Bw1", need=[f"c{u}" for u in range(18, 24)], deps=[(n, 0) for u in range(18, 24) for n in dw[u]] + [("Bx0", 0)])
        pre = []
        for k in range(3):
            lo, hi, d = [T(4) for _ in range(4)], [T(4) for _ in range(2)], T(4)
            for w in range(4):
                wrd.append(P(f"ds_read_b128 {lo[w]}, {W['am'][0]} offset:{12288 * k + 3072 * w}", deps=[("Bw1", 0)], pub=["wr"]))
                wrd.append(P(f"ds_read_b64 {hi[w >> 1]}[{2 * (w & 1)}:{2 * (w & 1) + 1}], {W['am'][1]} offset:{12288 * k + 3072 * w + 64}", deps=[("Bw1", 0)], pub=["wr"]))
            for n, x in enumerate(lo + hi):
                P(f"{M32} {d}, {x}, %ONES, {'0' if n == 0 else d}", chain=f"mean{k}")
            for r in range(4):
                P(f"v_mul_f32 {d}[{r}], {f32(-1.0 / 192)}, {d}[{r}]")
            pre.append(P(f"ds_write_b128 {W['amw']}, {d} offset:{128 * k}", pub=["wm"]))
        P("s_barrier", name="Bw2", need=["wm"], deps=[(n, 0) for n in pre])

    def center(s):
        for a in range(2):
            x, mu = T(6), T(4)
            wrd.append(P(f"ds_read_b128 {x}[0:3], {W['own'][0]} offset:{slot(s) + 768 * a}", deps=[("Bw1", 0)], pub=["wr"], look=9))
            wrd.append(P(f"ds_read_b64 {x}[4:5], {W['own'][1]} offset:{slot(s) + 768 * a + 64}", deps=[("Bw1", 0)], pub=["wr"], look=9))
            P(f"ds_read_b128 {mu}, {W['amr']} offset:{5120 * (s // 3) + 128 * (s % 3) + 64 * a}", deps=[("Bw2", 0)], look=9)
            ds = [T(4) for _ in range(3)]
            for j in range(3):
                P(f"{M16} {ds[j]}, {x}[{2 * j}:{2 * j + 1}], {MS}, {mu}", look=opt.get('clook', 8))
            for j in range(3):
                k = 6 * j + s
                for p in range(2):
                    src = f"{ds[j]}[{2 * p}], {ds[j]}[{2 * p + 1}]"
                    if k < 10:
                        P(f"v_cvt_pk_bf16_f32 {ds[j]}[{2 * p}], {src}")
                        P(f"v_accvgpr_write_b32 a{216 + 4 * k + 2 * a + p}, {ds[j]}[{2 * p}]")
                    else:
                        P(f"v_cvt_pk_bf16_f32 v{224 + 4 * (k - 10) + 2 * a + p}, {src}")

    def tr_unit(u):
        part, s = divmod(u, 6)
        rd[u] = []
        for j in range(3):
            b = 72 * part + wq(j, s)
            perm = part == 2 and j < 2
            for a in range(2):
                o = slot(u) + 768 * a + (8 * j if perm else 32 * j)
                rd[u].append(P(f"ds_read_b64_tr_b16 a[{b + 2 * a}:{b + 2 * a + 1}], {tr[0 if perm else 1]} offset:{o}",
                               need=[f"c{u}"], pub=[f"t{u}"], deps=[(n, 0) for n in dw[u]], cost=16 if perm else 8, **LZ))

    def gathers(q):
        gk = dict(deps=[("Bx", 0)], cost=opt.get("gcost", 24), look=999)
        for k in range(12):
            r = f"%B{q}{k // 4}[{k % 4}]"
            P(f"v_sub_u32 {r}, {aq[q]}, {ak[k]}", look=999)
            P(f"ds_read_b32 {r}, {r} offset:{4 * 84}", **gk)
        P(f"ds_read_b32 %BT[{q}], {aq[q]}", **gk)
        if q == 0:
            P(f"ds_read_b32 %BT[3], {ae} offset:{4 * 168}", **gk)

    def mask_fix():
        ball = ", ".join(f"%B{q}{k}" for q in range(3) for k in range(3)) + ", %BT"
        mm, x = [T() for _ in range(13)], T(2)
        m = ", ".join(mm)
        txt = f";! {ball}, {m}, {x}, s[20:23], s85, scc, vcc | {ball}, {tq0}, {G}, s[20:23], s{S_MASKW}\n"
        txt += f"""    s_cmp_ge_u32 s2, 247
    s_cbranch_scc1 L_mask{tag}
L_nomask{tag}:
;!OUT
L_mask{tag}:
    s_add_u32 s20, s20, s{S_MASKW}
    s_addc_u32 s21, s21, 0
    s_mov_b32 s22, 4802
    s_mov_b32 s23, 0x20000
    s_mov_b32 s85, {f32(LOG2E)}
    s_waitcnt vmcnt(0)
"""
        for q in range(3):
            txt += f"""    v_lshrrev_b32 {x}[0], 2, {tq0}
    v_add_u32 {x}[0], {4 * q}, {x}[0]
    v_mul_u32_u24 {x}[0], 98, {x}[0]
    v_mad_u32_u24 {x}[1], {G}, 24, {x}[0]
"""
            txt += "".join(f"    buffer_load_ushort {mm[k]}, {x}[1], s[20:23], 0 offen offset:{2 * k}\n" for k in range(12))
            txt += f"    buffer_load_ushort {mm[12]}, {x}[0], s[20:23], 0 offen offset:96\n    s_waitcnt vmcnt(0)\n"
            for k in range(13):
                dst = f"%B{q}{k // 4}[{k % 4}]" if k < 12 else f"%BT[{q}]"
                txt += f"    v_lshlrev_b32 {mm[k]}, 16, {mm[k]}\n    v_fmac_f32 {dst}, s85, {mm[k]}\n"
        txt += f"""    v_lshrrev_b32 {x}[0], 2, {tq0}
    v_lshl_add_u32 {x}[0], {G}, 2, {x}[0]
    v_cmp_gt_u32 vcc, 3, {G}
    v_mov_b32 {x}[1], 48
    s_nop 1
    v_cndmask_b32 {x}[0], {x}[1], {x}[0], vcc
    v_add_u32 {x}[0], {48 * 49}, {x}[0]
    v_lshlrev_b32 {x}[0], 1, {x}[0]
    buffer_load_ushort {mm[0]}, {x}[0], s[20:23], 0 offen
    s_waitcnt vmcnt(0)
    v_lshlrev_b32 {mm[0]}, 16, {mm[0]}
    v_fmac_f32 %BT[3], s85, {mm[0]}
    s_branch L_nomask{tag}"""
        P(txt, name="mask")
        a = T()
        P.many(f"""
        v_readlane_b32 s84, %BT[3], 48
        v_mov_b32 {a}, {f32(-1e30)}
        v_cmp_gt_u32 vcc, 16, {LANE}
        v_cndmask_b32 %BT[0], {a}, %BT[0], vcc
        v_cndmask_b32 %BT[1], {a}, %BT[1], vcc
        v_cndmask_b32 %BT[2], {a}, %BT[2], vcc
        v_cmp_gt_u32 vcc, 49, {LANE}
        v_cndmask_b32 %BT[3], {a}, %BT[3], vcc""")

    def addresses():
        a, b, c7, l16 = T(), T(), T(), T()
        P.v("hF0", 1)
        P.v("hF1", 1)
        P.v("aRec0", 1)
        P.v("aRec1", 1)
        P.many(f"""
        v_mul_u32_u24 {a}, 5120, {c4}
        v_mad_u32_u24 {a}, {c3}, s86, {a}
        v_and_b32 {c7}, 7, {C}
        v_xor_b32 {b}, {c7}, {G}
        v_lshl_add_u32 %hF0, {b}, 4, {a}
        v_xor_b32 %hF1, 64, %hF0
        v_add_u32 %aF0, {2 * RING}, %hF0
        v_xor_b32 %aF1, 64, %aF0
        s_mul_i32 s93, s{S_H}, 6
        v_add_u32 {a}, {3 * RING}, {a}
        v_add_u32 {b}, s93, {G}
        v_xor_b32 {b}, {c7}, {b}
        v_lshl_add_u32 %aW1, {b}, 4, {a}
        v_lshrrev_b32 {b}, 1, {G}
        v_add3_u32 {b}, {b}, s93, 4
        v_xor_b32 {b}, {c7}, {b}
        v_lshl_add_u32 {b}, {b}, 4, {a}
        v_and_b32 {a}, 1, {G}
        v_lshl_add_u32 %aW2, {a}, 3, {b}
        v_lshlrev_b32 {l16}, 4, {LANE}
        s_add_u32 s93, s{S_WOFF}, {RING}
        v_add_u32 %aL, s93, {l16}
        v_add_u32 %aNr, {L_LN}, {l16}
        s_lshr_b32 s93, s{S_H}, 1
        s_lshl_b32 s93, s93, 10
        s_lshl_b32 s94, s97, 1
        s_add_u32 s93, s93, s94
        v_add_u32 %aNw, s93, %aNr
        s_mul_i32 s93, s{S_H}, {E_HEAD}
        s_add_u32 s93, s93, {L_E - E_REC}
        v_mul_u32_u24 {a}, 80, {G}
        v_add_u32 {b}, s93, {a}
        v_mul_u32_u24 {a}, {E_REC}, {C}
        v_add_u32 %aRec0, {a}, {b}
        v_cmp_eq_u32 vcc, 0, {c4}
        v_cndmask_b32 %aE1, {oob}, {b}, vcc
        v_cmp_eq_u32 vcc, 3, {c3}
        v_cndmask_b32 %aE1, %aE1, {b}, vcc
        v_cmp_gt_u32 vcc, 5, {C}
        v_cndmask_b32 %aRec1, {oob}, %aRec0, vcc
        v_mul_u32_u24 {a}, 80, {c4}
        v_lshl_add_u32 {a}, {G}, 3, {a}
        v_lshl_add_u32 {a}, {c3}, 1, {a}
        v_add_u32 {a}, s93, {a}
        v_cmp_gt_u32 vcc, 3, {G}
        v_cndmask_b32 %aE2, {oob}, {a}, vcc
        v_mov_b32 %GD, {a if safe else 0}
        s_mov_b32 s{S_B}, {3 * RING}
        s_mov_b32 s{S_B + 1}, {2 * RING}
        s_mov_b32 s{S_B + 2}, {RING}
        s_mov_b32 s{S_B + 3}, 0
        s_mov_b32 s{S_SO + 1}, s{S_SO0}
        s_mov_b32 s{S_SO + 2}, 0
        s_mov_b32 s{S_SO + 3}, 0
        s_mov_b32 s{S_SO + 4}, 0
        s_sub_u32 s{S_REM}, s{S_NW}, 1
        s_mov_b32 s{S_IT}, -1
        s_add_u32 s{S_SO}, s{S_SO0}, s{S_STA}
        s_add_u32 s{S_CNT}, s{S_CNT0}, 1
        s_cmp_eq_u32 s{S_CNT}, 72
        s_cselect_b32 s93, s{S_STB}, 0
        s_cselect_b32 s{S_CNT}, 0, s{S_CNT}
        s_add_u32 s{S_SO}, s{S_SO}, s93""")

    exr, ewr, evw = [], [], []

    rec = {t: [T(4) for _ in range(5)] for t in range(2)}

    def e_dst(P, nm, t, j):
        return rec[t][2 * (nm == "K") + (j == 2)], 2 * (j & 1)

    def e_qk(nm, t):
        exr.extend(frag_reads(P, f"EX{nm}", t, "%hF", 2 * RING, deps=[("Bx0", 0)], pub=["b2"]))
        for j in range(3):
            if safe:
                chain(P, f"E{nm}{t}{j}", WQ if nm == "Q" else WK, j, f"EX{nm}", t)
                sumsq(P, f"ss{nm}e{t}", f"E{nm}{t}{j}", j == 0, S_EPSQ)
            else:
                h_chain(P, nm, t, j, f"EX{nm}", P.v("EB", 4), None, e_dst, "E")

    def e_norm(t):
        d, tmp = f"{rec[t][1]}[2]", T()
        if safe:
            norm_reduce(P, f"e{t}", "%P2")
            for nm in "QK":
                for j in range(3):
                    scale_pack(P, f"E{nm}{t}{j}", f"%NRe{t}[{int(nm == 'K')}]", *e_dst(P, nm, t, j), "f16")
            P(f"v_mov_b32 {d}, 0x3f80")
        else:
            if t == 0:
                h_reduce(P, (0, 1), "%EB", "ER")
            h_scale(P, t, "Q", e_dst, "ER")
            h_scale(P, t, "K", e_dst, "ER")
            for n in range(12):
                (q, o), (k, _) = e_dst(P, "Q", t, n // 4), e_dst(P, "K", t, n // 4)
                r, h = o + (n >> 1 & 1), n & 1
                P(f"v_fma_mix_f32 {d}, {q}[{r}], {k}[{r}], {d if n else 0} op_sel:[{h},{h},0] op_sel_hi:[1,1,0]")
            xgroup_max(P, d, tmp, "v_add_f32")
            P.many(f"""
            v_add_f32 {d}, s84, {d}
            v_exp_f32 {d}, {d}
            v_cvt_pk_bf16_f32 {d}, {d}, 0
            v_cmp_gt_u32 vcc, 16, {LANE}
            v_cndmask_b32 {d}, 0, {d}, vcc""")
        P(f"v_mov_b32 {rec[t][1]}[3], 0")
        base = E_REC + 16 * E_REC * t
        pad = P(f"ds_write_b128 %aRec{t}, %SEL offset:{base + 80}", look=999)
        for i in range(3):
            ewr.append(P(f"ds_write_b128 %aRec{t}, {rec[t][i]} offset:{base + 16 * i}", deps=[(pad, 0)]))
        ewr.append(P(f"ds_write_b64 %aRec{t}, {rec[t][3]}[0:1] offset:{base + E_KH}"))


    def e_v(t):
        q, qh, k, kh, v = rec[t]
        exr.extend(frag_reads(P, "EXV", t, "%hF", 2 * RING, deps=[("Bx0", 0)], pub=["b2"]))
        for j in range(3):
            chain(P, f"EV{t}{j}", WV, j, "EXV", t)
            pack(P, f"EV{t}{j}", *((kh, 2) if j == 0 else (v, 2 * j - 2)))
        base = E_REC + 16 * E_REC * t
        evw.append(P(f"ds_write_b64 %aRec{t}, {kh}[2:3] offset:{base + E_V}"))
        evw.append(P(f"ds_write_b128 %aRec{t}, {v} offset:{base + E_V + 8}"))

    def g_part(nm, t):
        exr.extend(frag_reads(P, f"HX{nm}", t, "%hF", deps=[("Bx0", 0)], pub=["b2"]))
        nb = P.v(f"HB{t & 2}", 4)
        for j in range(3):
            if nm == "V":
                chain(P, f"AV{t}{j}", WV, j, "HXV", t, swap=True)
                pack(P, f"AV{t}{j}", *v_dst(t, j))
            else:
                h_chain(P, nm, t, j, f"HX{nm}", nb)

    KT = [("E", 0), ("E", 1), ("A", 0), ("A", 1), ("A", 2)]

    def k_step(nm, s):
        for k, (pre, t) in enumerate(KT):
            if nm == "K" and s == 0:
                post("Q", k)
            x = T(4)
            off = (2 * RING if pre == "E" else 0) + 1536 * t + 128 * (s >> 1)
            exr.append(P(f"ds_read_b128 {x}, %hF{s & 1} offset:{off}", deps=[("Bx0", 0)], pub=["b2"]))
            for j in range(3):
                a = P.v(f"{pre}{nm}{t}{j}", 4)
                kw = dict(look=opt.get("klook", 6)) if nm == "K" and s == 0 else {}
                P(f"{M32} {a}, {(WQ if nm == 'Q' else WK)(j, s)}, {x}, {a if s else 0}", name=f"m{pre}{nm}{t}{j}{s}", **kw)

    def post(nm, k):
        pre, t = KT[k]
        for j in range(3):
            if pre == "E":
                h_chain(P, nm, t, j, None, P.v("EB", 4), None, e_dst, "E")
            else:
                h_chain(P, nm, t, j, None, P.v(f"HB{t & 2}", 4))

    def g_norm(tiles):
        if tiles == (2,):
            P("v_mov_b32 %HB2[2], 0")
            P("v_mov_b32 %HB2[3], 0")
        h_reduce(P, tiles, f"%HB{tiles[0]}")
        for t in tiles:
            h_scale(P, t, "K")
            h_scale(P, t, "Q")

    x1 = []

    def units(a, b):
        for u in range(a, b):
            tr_unit(u)
            stage(u + 6)

    def load_x1():
        for j in range(5):
            P(f"s_add_u32 m0, s{S_WOFF}, {RING + 1024 * j}", **LZ)
            x1.append(P(f"buffer_load_dwordx4 %g{j}, s[{S_X}:{S_X + 3}], s{S_SO} offen nt lds", pub=["x1"], **LZ))

    def bend():
        P("s_barrier", name="Bend", need=["x1", "wr"], deps=[(n, 0) for n in x1 + wrd + ["B2@0"]])
        a = T()
        P(f"s_lshl_b32 s93, s{S_H}, 10")
        P(f"v_add_u32 {a}, s93, %aNr")
        P(f"ds_write_b96 {a}, {EO}[0:2] offset:{L_EO - L_LN}", deps=[("Bend", 0)])

    shift = {o.name: s for o, s in body}
    keep = lambda o: (o.stage >= 0 and (safe or o.attr["act"] != "G")) or o.stage == -9
    items = [(o, 0) for o in L.ops if keep(o) and shift[o.name] <= 0 and o.name not in ("B1", "B3", "wB3", "wB2")]
    items += [(o, 1) for o in L.ops if shift[o.name] == -1 and o.name not in ("B3", "wB3") and (o.stage >= -1 or o.stage == -9)]
    have = {(o.name, u) for o, u in items}
    done = set()

    def adopt(pred):
        for o, u in items:
            if (o.name, u) in done or not pred(o, u):
                continue
            done.add((o.name, u))
            P.adopt(L, [(o, u)], have)
            c = P.ops[-1]
            c.attr["act"] = P.act
            if o.name.startswith("rdX"):
                c.deps.append(("Bend" if u else "Bx0", 0))
            if o.name == "B2":
                c.deps += [(n, 0) for n in exr + ["Bx0", "mask"]]
            if o.name.startswith("rdE"):
                c.deps += [(n, 0) for n in ewr[:4] + (evw[:2] if o.name.startswith("rdEV") else [])]
            if o.name.startswith("dma"):
                c.deps += [("B2@0", 0)] + [(n, 0) for n in x1]
                c.attr.update(lat=0, **LZ)

    order = opt.get("horder") or (
        "ba ad wa bx u0 u1 Q0 Q1 Q2 Q3 Q4 Q5 u2 x1 K0 K1 K2 K3 K4 ga0 ga1 ga2 mk K5 kp0 kp1 kp2 kp3 en0 gn0 kp4 gn2 st er s0 "
        "eV0 x0 eql eqs gV0 en1 s1 gV1 gV2 eV1 ev B2 pv0 wm x1s o oo0 eqp eqo s2 c0 pv1 c1 x2 c2 c3 oo1 c4 c5 pv2 oo2 end")
    if safe:
        order = "ad ba ga0 ga1 ga2 mk bx u0 u1 eQ0 eQ1 u2 x1 eK0 eK1 en0 en1 wa eV0 eV1 wm c0 c1 c2 c3 c4 c5 all end"
    for a in order.split():
        P.act = a
        if a == "ad": addresses()
        elif a == "ba": bias_addr()
        elif a[:2] == "ga": gathers(int(a[2]))
        elif a == "mk": mask_fix()
        elif a[0] in "QK": k_step(a[0], int(a[1]))
        elif a[:2] == "kp": post("K", int(a[2]))
        elif a[0] == "u": units(6 * int(a[1]), 6 * int(a[1]) + 6)
        elif a == "bx": P("s_barrier", name="Bx0", need=["x0", "xe"], deps=[(n, 0) for n in x0 + xdma + ["Bx"]])
        elif a == "x1": load_x1()
        elif a == "wa": wo_addr()
        elif a == "wm": wo_means()
        elif a[0] == "c": center(int(a[1]))
        elif a[:2] in ("eQ", "eK"): e_qk(a[1], int(a[2]))
        elif a[:2] == "en" and a != "end": e_norm(int(a[2]))
        elif a[:2] == "eV": e_v(int(a[2]))
        elif a[:2] == "gn": g_norm((0, 1) if a[2] == "0" else (2,))
        elif a[0] == "g": g_part(a[1], int(a[2]))
        elif a == "st": adopt(lambda o, u: u == 0 and o.attr["act"] == "G" and o.name != "B2")
        elif a == "B2": adopt(lambda o, u: o.name == "B2" and u == 0)
        elif a == "o": adopt(lambda o, u: u == 0 and o.attr["act"] in ("o0", "o1", "o2", "o3", "o4"))
        elif a == "all": adopt(lambda o, u: u == 0)
        elif a == "end":
            assert all((o.name, u) in done for o, u in items if u == 0)
            bend()
            adopt(lambda o, u: True)
        else:
            adopt(lambda o, u: u == 0 and o.attr["act"] == a.replace("x1s", "x1"))
    return P


def tail_program(L, body, safe, opt):
    P = Prog()
    P.pre = "t"
    P.vs.update(L.vs)
    T = P.t
    wm = opt.get("wm", 64)
    shift = {o.name: s for o, s in body}
    assert all(shift[n] == -1 for n in L.early)
    late = [n for n in L.stateful if n not in L.early and shift[n] != 0]
    assert all(next(o for o in L.ops if o.name == n).text.startswith(f"s_sub_u32 s{S_D + 1},") for n in late), late
    i1 = next(k for k, o in enumerate(L.ops) if o.name == "wLN")
    items = [(o, 0) for o in L.ops if shift[o.name] == 1]
    items += [(o, 1) for o in L.ops[:i1 + 1] if o.stage == -2 and shift[o.name] >= 0]
    assert not [o for o in L.ops[i1 + 1:] if o.stage in (-1, -2) and shift[o.name] == -1]
    P.adopt(L, items)
    pre1 = [o.name for o in P.ops if o.kind == "dsw"]
    LANE, C, G = lane_ids(P)
    for nm, src, a, b in (("aFo", "aF", 1, 0), ("aWy", "aW", 2, 1), ("aWe", "aW", 0, 1)):
        P(f"s_sub_u32 s84, s{S_B + a}, s{S_B + b}")
        for k in ((0, 1) if src == "aF" else (1, 2)):
            P(f"v_add_u32 {P.v(nm + str(k), 1)}, s84, %{src}{k}")
    for k in range(3):
        P(f"s_sub_u32 s84, s{S_B + k}, s{S_B + 3}")
        P(f"v_add_u32 {P.v(f'aL{k}', 1)}, s84, %aL")
    recs, EO, a, b = [T(), T()], T(4), T(), T()
    P.many(f"""
    s_mov_b32 s{S_OUT + 2}, {NBYTES}
    s_mul_i32 s84, s{S_H}, {E_HEAD}
    s_add_u32 s84, s84, {L_E}
    v_mul_u32_u24 {b}, 80, {G}
    v_add_u32 {b}, s84, {b}
    s_movk_i32 s84, {E_REC}
    s_sub_u32 s85, s{S_NW}, 1
    v_min_u32 {recs[0]}, s85, {C}
    v_mad_u32_u24 {recs[0]}, {recs[0]}, s84, {b}
    v_add_u32 {recs[1]}, 16, {C}
    v_min_u32 {recs[1]}, s85, {recs[1]}
    v_mad_u32_u24 {recs[1]}, {recs[1]}, s84, {b}
    s_lshl_b32 s84, s{S_H}, 10
    v_add_u32 {a}, s84, %aNr
    ds_read_b96 {EO}[0:2], {a} offset:{L_EO - L_LN}""")
    for t in range(2):
        p1, p2, sm, o = T(4), T(4), T(4), T(6)
        base, rec = 0, recs[t]
        P(f"ds_read_b128 {p1}, {rec} offset:{base}")
        P(f"ds_read_b128 {p2}, {rec} offset:{base + 16}")
        P(f"ds_read_b64 {o}[0:1], {rec} offset:{base + E_V}")
        P(f"ds_read_b128 {o}[2:5], {rec} offset:{base + E_V + 8}")
        P(f"{M32} {sm}, %ONES, {p1}, 0", chain=f"es{t}")
        P(f"{M32} {sm}, %ONES, {p2}, {sm}", chain=f"es{t}")
        P(f"v_rcp_f32 {sm}[0], {sm}[0]")
        lo, hi = T(4), T(2)
        for k in range(6):
            x = T()
            P.many(f"""
            v_lshlrev_b32 {x}, 16, {o}[{k}]
            v_and_b32 {o}[{k}], 0xffff0000, {o}[{k}]
            v_mul_f32 {x}, {x}, {sm}[0]
            v_mul_f32 {o}[{k}], {o}[{k}], {sm}[0]
            v_cvt_pk_bf16_f32 {f'{lo}[{k}]' if k < 4 else f'{hi}[{k - 4}]'}, {x}, {o}[{k}]""")
        pre1 += tile_write(P, lo, hi, t, f"wE{t}", wm, "%aWe", pub=["b1"])
    P("s_barrier", name="T1", need=["b1"], deps=[(n, 0) for n in pre1])

    def ln_reduce(tag, off, nt, bar):
        r = [T(4), T(4)]
        rn = [P(f"ds_read_b128 {r[k]}, %aNr offset:{off + 1024 * k}", deps=[(bar, 0)], pub=["lr" + tag], look=99) for k in range(2)]
        d = T(4)
        P(f"{M32} {d}, %SEL, {r[0]}, 0", chain="LN" + tag)
        P(f"{M32} {d}, %SEL, {r[1]}, {d}", chain="LN" + tag)
        for t in range(nt):
            P(f"v_rsq_f32 {d}[{t}], {d}[{t}]")
            P(f"v_mul_f32 {d}[{t}], s{S_SQ}, {d}[{t}]")
        return d, rn

    def final(y, d, t, ad, tok):
        lo, hi = T(4), T(2)
        scale_pack(P, f"{y}{t}0", f"{d}[{t}]", lo, 0)
        scale_pack(P, f"{y}{t}1", f"{d}[{t}]", lo, 2)
        scale_pack(P, f"{y}{t}2", f"{d}[{t}]", hi, 0)
        return tile_write(P, lo, hi, t, f"w{y}{t}", wm, ad, pub=[tok])

    def proj(y, fr, t, ad, tok):
        rn = frag_reads(P, fr, t, ad, deps=[("T1", 0)], pub=[tok])
        for j in range(3):
            chain(P, f"{y}{t}{j}", WO, j, fr, t)
            sumsq(P, f"ss{y}{t}", f"{y}{t}{j}", j == 0, S_EPSL)
        return rn

    def out(al, offs, so, bar):
        for j, g in enumerate(offs):
            z = T(4)
            P(f"ds_read_b128 {z}, {al} offset:{1024 * j}", deps=[(bar, 0)], look=99)
            P(f"buffer_store_dwordx4 {z}, {g}, s[{S_OUT}:{S_OUT + 3}], {so} offen {opt.get('stflag', 'sc1')}", look=99, gap=24)

    gs = [f"%g{j}" for j in range(5)]
    pre2 = proj("YB", "FB", 0, "%aFo", "t2")
    da, rn = ln_reduce("a", 0, 3, "T1")
    pre2 += proj("YB", "FB", 1, "%aFo", "t2")
    pre2 += final("Y", da, 0, "%aWy", "t2") + final("Y", da, 1, "%aWy", "t2")
    pre2 += proj("YB", "FB", 2, "%aFo", "t2")
    pre2 += final("Y", da, 2, "%aWy", "t2")
    lp = T(2)
    P(f"v_cvt_pk_bf16_f32 {lp}[0], %ssYB0, %ssYB1")
    P(f"v_cvt_pk_bf16_f32 {lp}[1], %ssYB2, %ssYB2")
    pre2.append(P(f"ds_write_b64 %aNw, {lp} offset:2048", pub=["t2"]))
    pre3 = proj("YE", "FE", 0, "%aF", "t3")
    P("s_barrier", name="T2", need=["t2", "lra"], deps=[(n, 0) for n in pre2 + rn])
    db, rn = ln_reduce("b", 2048, 3, "T2")
    pre3 += proj("YE", "FE", 1, "%aF", "t3")
    lp = T(2)
    P(f"v_cvt_pk_bf16_f32 {lp}[0], %ssYE0, %ssYE1")
    if safe:
        P(f"v_mov_b32 {lp}[1], 0")
    else:
        P.many(f"""
        v_and_b32 %GD, 0xb8000000, %GD
        v_cmp_ne_u32 vcc, 0, %GD
        v_mov_b32 {lp}[1], 0x3f803f80
        v_cndmask_b32 {lp}[1], 0, {lp}[1], vcc""")
    pre3.append(P(f"ds_write_b64 %aNw, {lp}", pub=["t3"], deps=[("T2", 0)]))
    P("s_barrier", name="T3", need=["t3"], deps=[(n, 0) for n in pre3 + ["T2"]])
    out("%aL2", gs, f"s{S_SO + 3}", "T2")
    pre4 = []
    for t in range(3):
        pre4 += final("YB", db, t, "%aW", "t4")
    de, rn = ln_reduce("e", 0, 2, "T3")
    for t in range(2):
        pre4 += final("YE", de, t, "%aWe", "t4")
    if not safe:
        P(f"v_cmp_neq_f32 vcc, 0, {de}[2]", name="guard", deps=[(o.name, 0) for o in P.ops if ("vcc", 0) in o.dset])
    P("s_barrier", name="T4", need=["t4"], deps=[(n, 0) for n in pre4 + ["T3"]])
    out("%aL1", gs, f"s{S_SO + 2}", "T4")
    out("%aL0", [f"{EO}[{j}]" for j in range(3)], "0", "T4")
    return P


def finite(P, fixed, liveout, prio=None, **sp):
    if prio:
        P.ops = reorder(P.ops, prio.split())
    sch = schedule(P.ops, 1, **sp)
    P.times = {x.op.name: x.t for x in sch}
    if VERB:
        step, row = 400, {}
        for x in sch:
            r = row.setdefault(x.t // step, dict(n={}, ev=[]))
            k = "idle" if x.li < 0 else x.op.kind
            r["n"][k] = r["n"].get(k, 0) + 1
            if x.op.kind == "barrier" or x.op.mn == "macro" or (x.op.kind == "mfma" and x.op.name.split("@")[0].endswith(("000", "100", "200", "0a"))) or x.op.name.endswith("_2"):
                r["ev"].append(x.op.name)
        for k in sorted(row):
            print(k * step, " ".join(f"{a}:{b}" for a, b in sorted(row[k]["n"].items())), "|", " ".join(row[k]["ev"]), file=sys.stderr)
    ops = [x.op for x in sch]
    n = len(ops)
    pre = {}
    for r in range(224, 256):
        first = next((k for k, o in enumerate(ops) if ("v", r) in o.dset | o.uset), 0)
        first = first if ("v", r) in ops[first].dset else 0
        pre[r] = ((1 << n) - 1) >> first << first
    al, pr = allocate(ops, P.vs, POOL + list(range(224, 256)), False, fixed=fixed, liveout=liveout, preocc=pre)
    assert check_dataflow(sch, al) == 0
    return [o.clone_with_text(substitute(o.text, al, P.vs)) for o in ops], sch[-1].t, pr


def variant(tag, safe, opt):
    L = loop_program(safe, opt)
    sp = dict(look_m=40, look_d=18, look_v=80)
    sp.update(opt.get("sched", {}))
    if safe:
        sp = dict(look_m=20, look_d=14, look_v=60)
    sch = schedule(L.ops, 7, **sp)
    body, cyc, same = extract_period(sch, L.anchor, 3)
    assert same, "schedule is not periodic"
    body = body[1:] + [(body[0][0], body[0][1] - 1)]
    ops = [o for o, s in body]
    al, pr = allocate(ops, L.vs, POOL, True, persistent=PERSIST, fixed=TOP)
    at = lambda i: next(k for k, x in enumerate(sch) if x.op.name == L.anchor and x.it == i)
    assert check_dataflow(sch[at(3):at(5)], al) == check_dataflow(sch[at(3):at(4)], al), "dataflow check failed"
    assert all(s in (-1, 0, 1) for o, s in body)
    loop = [o.clone_with_text(substitute(o.text, al, L.vs)) for o in ops]
    sccw = [k for k, o in enumerate(loop) if ("scc", 0) in o.dset or ("scc", 0) in o.uset]
    assert ("scc", 0) not in loop[sccw[0]].uset
    free = [k for k in range(sccw[-1] + 1, len(loop)) if loop[k].name == "_nop" and loop[k - 1].kind == "mfma"]
    loop[free[0]] = Ins(f"s_sub_u32 s{S_N}, s{S_N}, 1")
    loop[free[1]] = Ins(f"s_cmp_lg_u32 s{S_N}, 0")
    if loop[0].name == "_nop":
        loop.pop(0)
    loop.append(Ins(f"s_cbranch_scc1 L_loop{tag}"))
    lin = live_in(ops)
    fixed = {n: al[n] for n in {r[0][1:] for r in lin}}
    H = head_program(L, body, safe, opt)
    hdef = {r for o in H.ops for r in o.defs}
    if opt.get("ret"):
        return H, tail_program(L, body, safe, opt), fixed, [r for r in lin if r in hdef]
    hp = dict(HSCHED)
    hp.update(opt.get("hsched", {}))
    head, hc, hpr = finite(H, fixed, [r for r in lin if r in hdef], None if safe else opt.get("hprio", HPRIO), **hp)
    if isinstance(opt.get("pst"), list):
        print("model times", [(m, H.times[m]) for m in opt["pst"]], file=sys.stderr)
    Tl = tail_program(L, body, safe, opt)
    tp = dict(TSCHED)
    tp.update(opt.get("tsched", {}))
    tail, tc, tpr = finite(Tl, fixed, [], None if safe else opt.get("tprio", TPRIO), **tp)
    print(f"[{tag}] period {cyc}, pressure {pr}; head {hc} ({hpr}), tail {tc} ({tpr})", file=sys.stderr)
    stag = opt.get("stag") if not safe else None
    loops = {}
    for w, sh in enumerate(stag or [0]):
        lp = [o.clone_with_text(o.text) for o in loop]
        lp[-1] = Ins(f"s_cbranch_scc1 L_loop{tag}{w}")
        for bar in [o for o in lp if o.kind == "barrier"]:
            i = lp.index(bar)
            j = ([i - 1] + [k for k in range(i, len(lp)) if lp[k].kind == "mfma"])[sh] + 1
            assert not any(n == bar.name for o in lp[i + 1:j] for n, d in o.deps), bar.name
            if j != i:
                lp[i] = Ins("s_nop 0", name="_nop")
                if lp[j].name == "_nop":
                    lp[j] = bar
                else:
                    lp.insert(j, bar)
        loops[f"l{w}"] = lp
    paths = [[l] * 3 for l in loops] + [["h"] + [l] * n + ["t"] for l in loops for n in (1, 2, 3)]
    blocks = insert_waits(dict(h=head, t=tail, **loops), paths)
    loops = [prune_nops(blocks[l], True) for l in loops]
    head = fix_hazards(prune_nops(blocks["h"], False))
    tail = prune_nops(blocks["t"], False, loops[0][-12:])
    for lp in loops:
        assert not check_hazards(lp * 2)
        while check_hazards(head[-12:] + lp[:12]):
            head.append(Ins("s_nop 0"))
        tail = fix_hazards(tail, lp[-12:])
    print(f"[{tag}] loop {len(loops[0])} instrs est {[estimate_cycles(lp * 2) - estimate_cycles(lp) for lp in loops]}; head {len(head)} est {estimate_cycles(head)}; "
          f"tail {len(tail)} est {estimate_cycles(tail)}", file=sys.stderr)
    return head, loops, tail


def dump_code(opt):
    s = f"""    s_waitcnt vmcnt(0) lgkmcnt(0)
    s_nop 15
    s_barrier
    s_cmp_lg_u32 s2, {opt.get('dumpwg', 0)}
    s_cbranch_scc1 L_end
    s_load_dwordx2 s[94:95], s[0:1], 88
    v_mbcnt_lo_u32_b32 v0, -1, 0
    v_mbcnt_hi_u32_b32 v0, -1, v0
    v_lshlrev_b32 v0, 2, v0
    s_lshl_b32 s75, s{S_H}, 17
    v_add_u32 v0, s75, v0
    s_waitcnt lgkmcnt(0)
"""
    for f in "va":
        for r in range(256):
            s += f"    global_store_dword v0, {f}{r}, s[94:95] offset:{256 * (r % 8)}\n"
            if r % 8 == 7:
                s += "    v_add_u32 v0, 2048, v0\n    s_waitcnt vmcnt(8)\n"
    s += f"""    s_waitcnt vmcnt(0)
    v_mbcnt_lo_u32_b32 v0, -1, 0
    v_mbcnt_hi_u32_b32 v0, -1, v0
    v_lshlrev_b32 v0, 4, v0
    s_lshl_b32 s75, s{S_H}, 10
    v_add_u32 v0, s75, v0
    v_add_u32 v1, 0x80000, v0
"""
    for k in range(40):
        s += "    ds_read_b128 v[4:7], v0\n    s_waitcnt lgkmcnt(0)\n    global_store_dwordx4 v1, v[4:7], s[94:95]\n    v_add_u32 v0, 4096, v0\n    v_add_u32 v1, 4096, v1\n    s_waitcnt vmcnt(0)\n"
    return s + "    s_endpgm\n"


STAMP_REGS = [36, 3, 75, 6, 8, 10, 12, 14, 16, 18]


def build(opt):
    if opt.get("pst") or opt.get("tl"):
        POOL.remove(124)
    hF, lF, tF = variant("F", False, opt)
    hS, lS, tS = variant("S", True, opt) if not opt.get("noslow") else ([], [[]], [])

    outl = []

    def txt(seq):
        r = ""
        for o in seq:
            a, _, b = o.text.partition(";!OUT\n")
            outl.append(b + "\n" if b else "")
            r += (a if o.kind == "label" else "    " + a).rstrip() + "\n"
        return r

    diag = opt.get("stamp") or opt.get("seg") or opt.get("pst") or opt.get("nb") or opt.get("tl")
    pairs = []

    def stamp(kind="s_memrealtime"):
        r = [4, 6, 8, 10, 12, 14, 16, 18, 22, 86, 88, 90, 92, 94, 96, 98][len(pairs)]
        pairs.append(r)
        return Ins(f"{kind} s[{r}:{r + 1}]")

    pre = ""
    if opt.get("stamp"):
        pre = "    s_memrealtime s[36:37]\n"
        pre += "    s_memtime s[40:41]\n"
        hF += [stamp(), stamp("s_memtime")]
        tF = [stamp(), stamp("s_memtime")] + tF + [Ins("s_waitcnt vmcnt(0)"), stamp(), stamp("s_memtime")]
        pairs.append(40)
    if opt.get("seg"):
        st = [stamp("s_memtime") for _ in range(15)]
        a, b = opt["seg"]
        for lp in lF:
            ms = [k for k, o in enumerate(lp) if o.kind == "mfma"]
            pos = [ms[min(a + (b - a) * i // 14, len(ms) - 2)] for i in range(15)]
            print("seg est:", [estimate_cycles(lp[:pos[i + 1] + 1]) - estimate_cycles(lp[:pos[i] + 1]) for i in range(14)], "pos", pos, file=sys.stderr)
            for i in reversed(range(15)):
                k = pos[i] + 1
                while lp[k].kind in ("wait", "barrier"):
                    k += 1
                lp.insert(k, st[i])
    if opt.get("tl"):
        pre = "    s_memrealtime s[36:37]\n"
        lp = lF[0]
        k = next(i for i, o in enumerate(lp) if o.kind == "barrier")
        tm = "s_memtime" if opt["tl"] == "c" else "s_memrealtime"
        lp[k:k] = [Ins(f"s_mov_b32 m0, s{S_N}"), Ins("v_writelane_b32 v124, s4, m0")]
        lp[20:20] = [Ins(f"{tm} s[4:5]")]
    if opt.get("nb"):
        blk = hF if opt["nb"][0] == "h" else tF
        a, b = opt["nb"][1:]
        pre = "    s_memtime s[36:37]\n"
        idx = [a + (min(b, len(blk)) - a) * i // 7 for i in range(8)]
        print("nb", [(k, estimate_cycles(blk[:k])) for k in idx], file=sys.stderr)
        open(f"tmp/{opt['nb'][0]}.txt", "w").write("".join(f"{k}: {o.text.splitlines()[0][:110]}\n" for k, o in enumerate(blk)))
        st = [stamp("s_memtime") for _ in range(8)]
        for i in reversed(range(8)):
            k = idx[i]
            while k < len(blk) and blk[k].kind == "wait":
                k += 1
            blk.insert(k, st[i])
    if opt.get("pst"):
        tm = "s_memtime" if opt.get("cyc") else "s_memrealtime"
        pre = f"    {tm} s[36:37]\n"
        marks = opt["pst"]
        if isinstance(marks, tuple):
            idx = [marks[0] + (min(marks[1], len(hF) - 1) - marks[0]) * i // 14 for i in range(15)]
            for i in idx:
                hF[i].name = f"mark{i}"
            marks = [f"mark{i}" for i in idx]
        print("issue est at marks", [(o.name, estimate_cycles(hF[:k + 1])) for k, o in enumerate(hF) if o.name in marks], file=sys.stderr)
        open("head.txt", "w").write("".join(f"{k}: {o.text.splitlines()[0][:110]}\n" for k, o in enumerate(hF)))
        out = []
        for k, o in enumerate(hF):
            out.append(o)
            if o.name in marks:
                out += [Ins(f"{tm} s[38:39]"), Ins("s_waitcnt lgkmcnt(0)"), Ins(f"v_writelane_b32 v124, s38, {marks.index(o.name)}"), Ins(f"s_mov_b32 s39, 0x00010001")]
        hF = out
    ref = open("standalone__window_attn_swin_v2__vision.s.ref").read().split("\n")
    head = [l for l in ref if l.startswith(";") and "@launch" not in l]
    s = "\n".join(head) + f"\n; @launch grid=(256,1,1) block=(256,1,1) lds={LDS_TOTAL}\n"
    s += f""".amdgcn_target "amdgcn-amd-amdhsa--gfx950"
.text
.globl {KNAME}
.p2align 8
.type {KNAME},@function
{KNAME}:
{pre}    v_lshrrev_b32 v0, 6, v0
    s_cmp_ge_u32 s2, 256
    s_cbranch_scc1 L_end
    v_readfirstlane_b32 s{S_H}, v0
    s_nop 1
"""
    s += txt(hF) + (dump_code(opt) if opt.get("dump") == 0 else "")
    for w in range(1, len(lF)):
        s += f"    s_cmp_eq_u32 s{S_H}, {w}\n    s_cbranch_scc1 L_loopF{w}\n"
    for w, lp in enumerate(lF):
        s += f".p2align 6\nL_loopF{w}:\n" + txt(lp) + ("    s_branch L_tailF\n" if w + 1 < len(lF) else "")
    s += "L_tailF:\n" + (dump_code(opt) if opt.get("dump") == 1 else "") + txt(tF)
    if diag:
        s += "    s_load_dwordx2 s[100:101], s[0:1], 88\n    s_waitcnt lgkmcnt(0)\n    v_mov_b32 v4, s36\n"
        s += "".join(f"    v_mov_b32 v{5 + i}, s{r}\n" for i, r in enumerate(pairs))
        s += f"    s_lshl_b32 s75, s2, 2\n    s_add_u32 s75, s75, s{S_H}\n    s_lshl_b32 s75, s75, 6\n    v_mov_b32 v2, s75\n"
        s += "".join(f"    global_store_dwordx4 v2, v[{4 + 4 * i}:{7 + 4 * i}], s[100:101] offset:{16 * i}\n" for i in range(4))
        if opt.get("pst"):
            s += "    v_mbcnt_lo_u32_b32 v3, -1, 0\n    v_mbcnt_hi_u32_b32 v3, -1, v3\n    v_lshl_add_u32 v2, v3, 2, v2\n    s_mov_b64 exec, 0x7fff\n    s_waitcnt vmcnt(0)\n    global_store_dword v2, v124, s[100:101] offset:4\n    s_mov_b64 exec, -1\n"
        if opt.get("tl"):
            s += "    v_mbcnt_lo_u32_b32 v3, -1, 0\n    v_mbcnt_hi_u32_b32 v3, -1, v3\n    v_lshlrev_b32 v2, 2, v2\n    v_lshl_add_u32 v2, v3, 2, v2\n    v_add_u32 v2, 0x100000, v2\n    global_store_dword v2, v124, s[100:101]\n"
    s += "    s_nop 4\n    s_cbranch_vccnz L_slow\nL_end:\n    s_endpgm\n"
    s += "L_slow:\n    s_waitcnt vmcnt(0) lgkmcnt(0)\n    s_nop 15\n    s_barrier\n"
    s += txt(hS) + ".p2align 6\nL_loopS0:\n" + txt(lS[0]) + txt(tS) + "    s_endpgm\n"
    s += "".join(outl) + "".join(outl)
    s += f""".section .rodata,"a"
.p2align 6
.amdhsa_kernel {KNAME}
  .amdhsa_next_free_vgpr 512
  .amdhsa_next_free_sgpr 102
  .amdhsa_accum_offset 256
  .amdhsa_group_segment_fixed_size 0
  .amdhsa_kernarg_size 96
  .amdhsa_user_sgpr_count 2
  .amdhsa_user_sgpr_kernarg_segment_ptr 1
  .amdhsa_system_sgpr_workgroup_id_x 1
.end_amdhsa_kernel
"""
    return s


if __name__ == "__main__":
    out = sys.argv[1] if len(sys.argv) > 1 else "standalone__window_attn_swin_v2__vision.s"
    opt = {}
    for a in sys.argv[2:]:
        k, _, v = a.partition("=")
        opt[k] = eval(v) if v else True
    open(out, "w").write(build(opt))
```

```python
import re
import random

TRANS = ("v_exp_f32", "v_rsq_f32", "v_rcp_f32", "v_log_f32", "v_sqrt_f32")
_REG = re.compile(r"^([vas])(\d+)$")
_RNG = re.compile(r"^([vas])\[(\d+):(\d+)\]$")
_VR1 = re.compile(r"^%(\w+)$")
_VR2 = re.compile(r"^%(\w+)\[(\d+)\]$")
_VR3 = re.compile(r"^%(\w+)\[(\d+):(\d+)\]$")
_VSUB = re.compile(r"%(\w+)(?:\[(\d+)(?::(\d+))?\])?")


def parse_operand(tok, vsize):
    tok = tok.strip()
    if tok.startswith("-"):
        tok = tok[1:]
    if tok.startswith("abs(") and tok.endswith(")"):
        tok = tok[4:-1]
    if tok.startswith("|") and tok.endswith("|"):
        tok = tok[1:-1]
    m = _REG.match(tok)
    if m:
        return [(m.group(1), int(m.group(2)))]
    m = _RNG.match(tok)
    if m:
        return [(m.group(1), i) for i in range(int(m.group(2)), int(m.group(3)) + 1)]
    m = _VR1.match(tok)
    if m:
        return [("%" + m.group(1), i) for i in range(vsize[m.group(1)])]
    m = _VR2.match(tok)
    if m:
        assert int(m.group(2)) < vsize[m.group(1)], tok
        return [("%" + m.group(1), int(m.group(2)))]
    m = _VR3.match(tok)
    if m:
        assert int(m.group(3)) < vsize[m.group(1)], tok
        return [("%" + m.group(1), i) for i in range(int(m.group(2)), int(m.group(3)) + 1)]
    if tok in ("vcc", "exec", "m0", "scc"):
        return [(tok, 0)]
    return []


def split_ops(s):
    out, depth, cur = [], 0, ""
    for ch in s:
        if ch == "[":
            depth += 1
        elif ch == "]":
            depth -= 1
        if ch == "," and depth == 0:
            out.append(cur)
            cur = ""
        else:
            cur += ch
    if cur.strip():
        out.append(cur)
    return [o.strip() for o in out]


class Ins:
    def __init__(self, text, vsize=None, name=None, stage=0, deps=(), pub=(), need=(), chain=None, **kw):
        self.text = text.strip()
        self.name = name
        self.stage = stage
        self.deps = list(deps)
        self.pub = list(pub)
        self.need = list(need)
        self.chain = chain
        self.attr = kw
        self.parse(vsize or {})

    def clone_with_text(self, text):
        n = Ins(text, None, self.name, self.stage, self.deps, self.pub, self.need, self.chain, **self.attr)
        return n

    def parse(self, vsize):
        t = self.text
        self.defs, self.uses, self.srcC, self.data = [], [], [], []
        self.dpp = self.perm = False
        self.slots = 1
        if t.startswith(";!"):
            head = t.split("\n", 1)[0][2:]
            d, u = head.split("|")
            self.mn, self.kind, self.trans = "macro", ("salu" if self.attr.get("as_salu") else "valu"), False
            self.defs = [r for o in split_ops(d) for r in parse_operand(o, vsize)]
            self.uses = [r for o in split_ops(u) for r in parse_operand(o, vsize)]
            self.slots = self.attr.get("cost", 2)
            self.dset, self.uset = set(self.defs), set(self.uses)
            return
        if t.endswith(":") or t.startswith("."):
            self.mn, self.kind, self.slots = t, "label", 0
            return
        parts = t.split(None, 1)
        mn = self.mn = parts[0]
        rest = parts[1] if len(parts) > 1 else ""
        ops = split_ops(rest)
        mods = ""
        if ops:
            last = ops[-1].split(None, 1)
            ops[-1] = last[0]
            mods = last[1] if len(last) > 1 else ""
        R = [parse_operand(o, vsize) for o in ops]
        flat = lambda xs: [r for x in xs for r in x]
        if mn.startswith("v_mfma"):
            self.kind, self.slots = "mfma", 2
            self.defs, self.srcC = R[0], R[3]
            self.uses = R[1] + R[2] + R[3]
            self.ab = R[1] + R[2]
        elif mn.startswith("ds_read"):
            self.kind = "dsr"
            self.defs, self.uses = R[0], R[1]
        elif mn.startswith("ds_write"):
            self.kind = "dsw"
            self.uses = flat(R)
            self.slots = len(self.uses)
        elif mn.startswith("ds_bpermute") or mn.startswith("ds_swizzle"):
            self.kind = "dsr"
            self.defs, self.uses = R[0], flat(R[1:])
            self.slots = len(self.uses)
        elif mn.startswith("buffer_load"):
            if re.search(r"\blds\b", mods):
                self.kind = "dma"
                self.uses = flat(R) + [("m0", 0)]
            else:
                self.kind = "vld"
                self.defs, self.uses = R[0], flat(R[1:])
        elif mn.startswith("global_load"):
            self.kind = "vld"
            self.defs, self.uses = R[0], flat(R[1:])
            if "d16_hi" in mn:
                self.uses = self.uses + R[0]
        elif mn.startswith("buffer_store"):
            self.kind = "vst"
            self.uses, self.data = flat(R), R[0]
        elif mn.startswith("global_store"):
            self.kind = "vst"
            self.uses, self.data = flat(R), R[1]
        elif mn.startswith("v_"):
            self.kind = "valu"
            base = re.sub(r"_(e32|e64|dpp|sdwa)$", "", mn)
            self.trans = base in TRANS
            self.dpp = mn.endswith("_dpp")
            self.perm = mn.startswith("v_permlane")
            if self.trans or self.perm:
                self.slots = 2
            self.defs, self.uses = R[0], flat(R[1:])
            if self.perm:
                self.defs = R[0] + R[1]
                self.uses = R[0] + R[1]
            if base.startswith("v_fmac") or base.startswith("v_pk_fmac") or base == "v_writelane_b32":
                self.uses = self.uses + R[0]
            if self.dpp and ("row_mask:0xf" not in mods or "bank_mask:0xf" not in mods):
                self.uses = self.uses + R[0]
            if base in ("v_add_co_u32", "v_addc_co_u32"):
                self.defs = R[0] + R[1]
                self.uses = flat(R[2:])
        elif mn == "s_waitcnt":
            self.kind = "wait"
        elif mn == "s_nop":
            self.kind = "nop"
            self.slots = int(ops[0]) + 1
        elif mn == "s_barrier":
            self.kind = "barrier"
        elif mn.startswith("s_cbranch") or mn in ("s_branch", "s_endpgm"):
            self.kind = "branch"
            if "scc" in mn:
                self.uses = [("scc", 0)]
            if "vcc" in mn:
                self.uses = [("vcc", 0)]
        elif mn.startswith("s_load") or mn in ("s_memtime", "s_memrealtime"):
            self.kind = "smem"
            self.defs, self.uses = R[0], flat(R[1:])
        elif mn.startswith("s_"):
            self.kind = "salu"
            if mn.startswith("s_cmp") or mn.startswith("s_bitcmp"):
                self.defs, self.uses = [("scc", 0)], flat(R)
            elif mn in ("s_setprio", "s_sleep"):
                pass
            else:
                self.defs, self.uses = R[0], flat(R[1:])
                if mn.startswith("s_bitset"):
                    self.uses = self.uses + R[0]
                if not mn.startswith(("s_mov", "s_cselect", "s_mul", "s_getpc", "s_ff1", "s_bitset", "s_bfm")):
                    self.defs = self.defs + [("scc", 0)]
                if mn.startswith("s_cselect") or mn in ("s_addc_u32", "s_subb_u32"):
                    self.uses = self.uses + [("scc", 0)]
                if "saveexec" in mn:
                    self.defs = self.defs + [("exec", 0)]
        else:
            raise ValueError("unknown instruction: " + t)
        self.dset, self.uset = set(self.defs), set(self.uses)

    @property
    def states(self):
        return self.slots if self.kind == "nop" else (0 if self.kind == "label" else 1)

    def __repr__(self):
        return f"<{self.name or ''} {self.text}>"


def is_sreg(r):
    return r[0] in ("s", "vcc")


def hazard(p, c):
    if p.kind == "label" or c.kind == "label":
        return 0
    w = 0
    if p.kind == "mfma":
        if c.kind == "mfma":
            if p.dset & set(c.ab):
                w = max(w, 8)
            if p.dset & set(c.srcC) and (p.defs != c.srcC or p.mn != c.mn):
                w = max(w, 6)
        else:
            if p.dset & (c.uset | c.dset):
                w = max(w, 8)
            if set(p.srcC) & c.dset:
                w = max(w, 3)
    elif p.kind == "valu":
        raw = p.dset & c.uset
        vraw = {r for r in raw if not is_sreg(r) and r[0] != "exec"}
        sraw = {r for r in raw if is_sreg(r)}
        if vraw:
            if c.kind == "mfma":
                w = max(w, 2)
            if c.kind == "valu":
                if c.dpp or c.perm:
                    w = max(w, 2)
                if p.trans or c.mn.startswith("v_readfirstlane") or c.mn.startswith("v_readlane"):
                    w = max(w, 1)
                if ("op_sel" in p.text and not p.mn.startswith("v_pk_") and p.mn != "v_fma_mix_f32") or "sdwa" in p.mn:
                    w = max(w, 1)
        if sraw:
            if c.kind == "valu":
                w = max(w, 4 if "lane" in c.mn else 2)
            elif c.kind in ("vld", "vst", "dma"):
                w = max(w, 5)
            else:
                w = max(w, 2)
    elif p.kind == "vst":
        if len(p.data) >= 3 and set(p.data) & c.dset:
            w = max(w, 2)
    elif p.kind == "salu":
        if ("m0", 0) in p.dset and c.kind == "dma":
            w = max(w, 1)
    elif p.kind == "dsr":
        if c.kind == "valu" and (c.dpp or c.perm) and p.dset & c.uset:
            w = max(w, 2)
    return w


def fix_hazards(seq, prefix=()):
    out = list(prefix)
    n0 = len(out)
    for c in seq:
        need, dist = 0, 0
        for p in reversed(out):
            if dist >= 10:
                break
            need = max(need, hazard(p, c) - dist)
            dist += p.states
        if need > 0:
            out.append(Ins(f"s_nop {need - 1}"))
        out.append(c)
    return out[n0:]


def check_hazards(seq):
    bad = []
    for i, c in enumerate(seq):
        dist = 0
        for j in range(i - 1, -1, -1):
            if dist >= 10:
                break
            if hazard(seq[j], c) > dist:
                bad.append((seq[j], c, dist))
            dist += seq[j].states
    return bad


LG = ("dsr", "dsw")
VM = ("vld", "vst", "dma")
SC = ("salu", "barrier", "smem")


class WaitState:
    def __init__(self):
        self.q = {"lg": [], "vm": []}

    def copy(self):
        n = WaitState()
        n.q = {k: list(v) for k, v in self.q.items()}
        return n


def insert_waits(blocks, paths, hoist=True, merge=128):
    waits = {b: {} for b in blocks}
    MAXC = {"lg": 15, "vm": 63}
    tm = {}
    for b, seq in blocks.items():
        tm[b] = []
        tm[b].append(estimate_cycles(seq, tm[b]))

    def run(path):
        changed = False
        q = {"lg": [], "vm": []}
        serial = 0
        base, when = 0, {}
        for bi, b in enumerate(path):
            seq = blocks[b]
            base += tm[path[bi - 1]][-1] if bi else 0
            issued_at = {}
            for i, c in enumerate(seq):
                for k, n in waits[b].get(i, {}).items():
                    q[k] = q[k][len(q[k]) - n:] if 0 < n < len(q[k]) else ([] if n == 0 else q[k])
                if c.kind == "wait":
                    for k, pat in (("lg", r"lgkmcnt\((\d+)\)"), ("vm", r"vmcnt\((\d+)\)")):
                        m = re.search(pat, c.text)
                        if m:
                            n = int(m.group(1))
                            q[k] = q[k][len(q[k]) - n:] if 0 < n < len(q[k]) else ([] if n == 0 else q[k])
                    continue
                if c.kind == "label":
                    continue
                touch = c.uset | c.dset
                for k in ("lg", "vm"):
                    tgt = -1
                    for j, (p, sid) in enumerate(q[k]):
                        if k == "vm" and c.kind == "vld" and "d16_hi" in c.mn and p.dset == c.dset:
                            continue
                        if (p.dset & touch) or (set(p.pub) & set(c.need)):
                            tgt = j
                    if tgt >= 0:
                        pos = i
                        if hoist:
                            j = i - 1
                            if c.kind == "barrier" and j >= 0 and seq[j].kind == "mfma":
                                j -= 1
                            while j >= 0 and seq[j].kind not in ("mfma", "label", "branch"):
                                j -= 1
                            if j >= 0 and seq[j].kind == "mfma" and issued_at.get(q[k][tgt][1], -1) < j and i - j < 12:
                                pos = j + 1
                        while k == "lg" and tgt + 1 < len(q[k]) and when[q[k][tgt + 1][1]] + merge <= base + tm[b][pos]:
                            tgt += 1
                        n = sum(1 for (p, sid) in q[k][tgt + 1:] if issued_at.get(sid, -1) < pos)
                        n = min(n, MAXC[k])
                        w = waits[b].setdefault(pos, {})
                        if w.get(k, 99) > n:
                            w[k] = n
                            changed = True
                        q[k] = q[k][tgt + 1:]
                k = "lg" if c.kind in LG else "vm" if c.kind in VM else None
                if k:
                    serial += 1
                    q[k].append((c, serial))
                    issued_at[serial] = i
                    when[serial] = base + tm[b][i]
        return changed

    for _ in range(10):
        if not any([run(p) for p in paths]):
            break
    else:
        raise RuntimeError("waits did not converge")
    out = {}
    for b, seq in blocks.items():
        o = []
        for i, c in enumerate(seq):
            w = waits[b].get(i)
            if w:
                t = "s_waitcnt"
                if "vm" in w:
                    t += f" vmcnt({w['vm']})"
                if "lg" in w:
                    t += f" lgkmcnt({w['lg']})"
                o.append(Ins(t))
            o.append(c)
        out[b] = o
    return out


def estimate_cycles(seq, times=None):
    t, mf_free, prev, vec_free = 0, 0, None, 0
    lastm = (None, -99)
    for c in seq:
        if times is not None:
            times.append(t)
        if c.kind == "label":
            continue
        if c.kind == "mfma":
            t = max(t, mf_free, vec_free)
            sh = "x16_" in c.mn
            if lastm[0] and not sh:
                t = max(t, lastm[1] + 20)
            ex = max(t, lastm[1] + 20) if (sh and not lastm[0]) else t
            lastm = (sh, ex)
            mf_free, vec_free = ex + 16, t + 8
            t += 4
        elif c.kind in ("valu",) + LG + VM:
            t = max(t, vec_free)
            if c.kind != "valu" and prev is not None and prev[0] == "valu":
                t = max(t, prev[1] + 8)
            if c.kind == "vst":
                mf_free = max(mf_free, t + 4 + 4 * len(c.data))
            t += 4 * c.slots
            if c.kind == "valu":
                prev = ("valu", t)
        elif c.kind == "branch":
            t += 24
        else:
            t += max(4 * c.slots, c.attr.get("hold", 0))
        if c.kind in ("mfma",) + LG + VM:
            prev = None
    return t


def lds_cost(o):
    if "cost" in o.attr:
        return o.attr["cost"]
    if o.kind == "dsr":
        return 16 if len(o.defs) > 2 else 8
    return {2: 16, 3: 32, 4: 40, 5: 52}[o.slots]


class Inst:
    __slots__ = ("op", "it", "li", "preds", "idx", "t", "mpos", "nsucc", "prod", "cons", "succ", "npend", "hz", "members")


FLAGS = (("scc", 0), ("vcc", 0))


def schedule(prog, niter, lds_lat=140, look_m=24, look_d=14, look_v=60, lds_slack=0, vm_gap=64, bar_gap=140, fit=True, vm_lat=700, vm_first=0, vm_rate=76, vm_q=99, strict=True, bar_cost=0):
    byname = {o.name: i for i, o in enumerate(prog)}
    assert len(byname) == len(prog), "duplicate op names"
    insts = []
    lastw, readers = {}, {}
    mcount = 0
    for it in range(niter):
        for li, o in enumerate(prog):
            x = Inst()
            x.op, x.it, x.li, x.idx, x.t = o, it, len(insts), None, None
            x.mpos = mcount
            if o.kind == "mfma":
                mcount += 1
            preds = {}
            x.prod = {}
            x.cons = {}
            for r in o.uses:
                if r in lastw:
                    preds[lastw[r].li] = lastw[r]
                    x.prod[r] = lastw[r]
                    if r in FLAGS:
                        lastw[r].cons.setdefault(r, []).append(x)
            for r in o.defs:
                if r in FLAGS:
                    continue
                if r in lastw:
                    preds[lastw[r].li] = lastw[r]
                for y in readers.get(r, ()):
                    preds[y.li] = y
            for (nm, d) in o.deps:
                j = (it + d) * len(prog) + byname[nm]
                if it + d >= 0:
                    assert j < len(insts), f"dep of {o.name} on later op {nm}"
                    preds[j] = insts[j]
            preds.pop(x.li, None)
            x.preds = list(preds.values())
            for r in o.uses:
                readers.setdefault(r, []).append(x)
            for r in o.defs:
                lastw[r] = x
                readers[r] = []
            insts.append(x)
    import bisect
    chains = {}
    for x in insts:
        x.succ = []
        if x.op.kind == "mfma" and x.op.chain is not None:
            chains.setdefault((x.op.chain, x.it), []).append(x)
    for x in insts:
        x.npend = len(x.preds)
        x.members = chains.get((x.op.chain, x.it), ()) if x.op.kind == "mfma" else ()
        for p in x.preds:
            p.succ.append(x)
    avail = [x for x in insts if x.npend == 0]
    akey = [x.li for x in avail]
    for x in avail:
        x.hz = (0, 0)
    others = [x for x in insts if x.op.kind != "mfma" and not x.op.attr.get("lazy")]
    ptr = dict(o=0, left=len(insts))

    def limits(x):
        n0, t0 = 0, 0
        for p in x.preds:
            n0 = max(n0, p.idx + 1 + hazard(p.op, x.op))
            k = p.op.kind
            tok = set(p.op.pub) & set(x.op.need)
            if k == "dsr" and (p.op.dset & (x.op.uset | x.op.dset) or tok) or k == "dsw" and tok:
                t0 = max(t0, p.t + lds_lat)
            if k in ("vld", "dma") and (p.op.dset & (x.op.uset | x.op.dset) or tok):
                t0 = max(t0, p.nsucc)
            t0 = max(t0, p.t + p.op.attr.get("lat", 0))
        return n0, t0

    out = []
    state = dict(t=0, mf_free=0, vec_free=0, lastvalu=None, n=0, chain=None, free=False, lastm=(None, -99))
    last = dict(lds=-999, vm=-999, vst=-999, vmg=0, nm=0, quiet=0)
    vmq = []

    flag = {r: [] for r in FLAGS}

    def spaced(x, t):
        k = x.op.kind
        if k in LG:
            return last["lds"] - t <= lds_slack
        if k in VM:
            return t >= last["vm"] + last["vmg"] and sum(w for c, w in vmq if c > t) < vm_q
        if k == "barrier":
            return t >= last["vst"] + bar_gap
        if k == "salu":
            return t >= last["quiet"]
        return True

    def nop(t):
        z = Inst()
        z.op, z.it, z.li, z.preds, z.prod = Ins("s_nop 0", name="_nop"), -1, -1, [], {}
        z.idx, z.t = state["n"], t
        state["n"] += 1
        out.append(z)

    def ready(x, t):
        if state["n"] < x.hz[0] or t < x.hz[1] or not spaced(x, t):
            return False
        for r in FLAGS:
            if r in x.op.dset:
                if any(y.idx is None and y is not x for y in flag[r]):
                    return False
                grp = x.cons.get(r, ())
                if any(p.idx is None and p is not x and p not in grp for y in grp for p in y.preds):
                    return False
        return True

    def emit(x, t):
        x.idx, x.t = state["n"], t
        state["n"] += 1
        for r in FLAGS:
            if r in x.op.dset:
                flag[r] = x.cons.get(r, [])
        k = x.op.kind
        if k in LG:
            last["lds"] = max(last["lds"], t) + lds_cost(x.op)
        if k in VM:
            w = x.op.attr.get("w", 1)
            x.nsucc = max(t + vm_lat, vm_first, x.op.attr.get("land", 0), (vmq[-1][0] if vmq else 0) + int(vm_rate * w))
            vmq.append((x.nsucc, w))
            del vmq[:-40]
            last["vm"], last["vmg"] = t, x.op.attr.get("gap", vm_gap)
        if k == "mfma":
            last["nm"] += 1
        if k == "barrier":
            last["quiet"] = t + x.op.attr.get("lat", 0)
        if k == "vst":
            last["vst"] = t
        out.append(x)
        i = bisect.bisect_left(akey, x.li)
        del akey[i], avail[i]
        ptr["left"] -= 1
        for y in x.succ:
            y.npend -= 1
            if y.npend == 0:
                y.hz = limits(y)
                i = bisect.bisect_left(akey, y.li)
                akey.insert(i, y.li)
                avail.insert(i, y)

    stall = 0
    while ptr["left"]:
        t = state["t"]
        win = avail
        while ptr["o"] < len(others) and others[ptr["o"]].idx is not None:
            ptr["o"] += 1
        first_m = last["nm"] if last["nm"] < mcount else 10 ** 9
        first_o = others[ptr["o"]].mpos if ptr["o"] < len(others) else 10 ** 9
        if state["free"]:
            state["free"] = False
            x = next((x for x in win if x.op.kind in SC and x.mpos <= first_m + look_v and ready(x, t)), None)
            if x is not None:
                emit(x, t)
            else:
                nop(t)
            state["t"] = state["vec_free"] + (bar_cost if x is not None and x.op.kind == "barrier" else 0)
            if x is not None:
                state["t"] = max(state["t"], t + x.op.attr.get("hold", 0))
            continue
        if t >= state["mf_free"]:
            cand = None
            for x in win:
                if x.op.kind != "mfma":
                    continue
                if state["lastm"][0] and "x16_" not in x.op.mn and t < state["lastm"][1] + 20:
                    continue
                if state["chain"] is not None:
                    if (x.op.chain, x.it) == state["chain"]:
                        cand = x if ready(x, t) else None
                        break
                    continue
                if x.mpos > first_o + x.op.attr.get("look", look_m):
                    continue
                if ready(x, t) and all(ready_chain(y, x, strict) for y in x.members):
                    cand = x
                    break
            if cand is not None:
                emit(cand, t)
                rest = any(y.idx is None for y in cand.members)
                state["chain"] = (cand.op.chain, cand.it) if rest else None
                sh = "x16_" in cand.op.mn
                ex = max(t, state["lastm"][1] + 20) if (sh and not state["lastm"][0]) else t
                state.update(mf_free=ex + 16, vec_free=t + 8, t=t + 4, lastvalu=None, free=True, lastm=(sh, ex))
                if cand.op.attr.get("brk"):
                    nop(t + 4)
                    state.update(t=t + cand.op.attr["brk"], free=False)
                continue
        mem_ok = state["lastvalu"] is None or t >= state["lastvalu"] + 8
        room = state["mf_free"] - t
        cand = None
        if mem_ok:
            ms = [x for x in win if x.op.kind in LG + VM and x.mpos <= first_m + x.op.attr.get("look", look_d) and ready(x, t)]
            if fit and room == 4:
                ms = [x for x in ms if x.op.slots == 1 and x.op.kind != "vst"]
            cand = ms[0] if ms else None
        if cand is None:
            vs = [x for x in win if x.op.kind == "valu" and x.mpos <= first_m + x.op.attr.get("look", look_v) and ready(x, t)]
            if vs and fit and room == 4:
                vs = [x for x in vs if x.op.slots == 1]
            if vs:
                cand = vs[0]
                if fit and room == 8 and cand.op.slots == 1 and not any(y.op.slots == 1 for y in vs[1:]):
                    cand = vs[1] if len(vs) > 1 else cand
        if room <= -8:
            lim = lambda x: x.mpos <= first_m + x.op.attr.get("look", look_d if x.op.kind in LG + VM else look_v)
            y = next((x for x in win if x.op.kind != "mfma" and lim(x) and ready(x, t)), None)
            if y is not None and y.op.kind in LG + VM and not mem_ok:
                z = next((x for x in win if x.op.kind in SC and lim(x) and ready(x, t)), None)
                if z is not None:
                    emit(z, t)
                state["t"] = t + 4
                continue
            if y is not None and y.op.kind in SC:
                emit(y, t)
                state["t"] = t + 4 + (bar_cost if y.op.kind == "barrier" else 0)
                continue
        if cand is not None:
            emit(cand, t)
            if cand.op.kind == "vst":
                state["mf_free"] = max(state["mf_free"], t + 4 + 4 * len(cand.op.data))
            state["t"] = t + 4 * cand.op.slots
            state["lastvalu"] = state["t"] if cand.op.kind == "valu" else None
            continue
        x = next((x for x in win if x.op.kind in SC and x.mpos <= first_m + look_v and ready(x, t)), None)
        if x is not None and t >= state["mf_free"]:
            emit(x, t)
            state["t"] = t + 4 + (bar_cost if x.op.kind == "barrier" else 0)
            continue
        nop(t)
        stall += 1
        if stall > 20000:
            raise RuntimeError("scheduler deadlock near " + repr([p.op for p in avail[:5]]))
        state["t"] = t + 4
    return out


def ready_chain(y, head, strict):
    if y is head:
        return True
    for p in y.preds:
        if p.idx is None and not (p.op.kind == "mfma" and (p.op.chain, p.it) == (y.op.chain, y.it)):
            if p.op.kind == "dsr" and not (strict and p.op.attr.get("lazy")):
                continue
            return False
    return True


def extract_period(sched, anchor, it):
    def cut(i):
        a = next(k for k, x in enumerate(sched) if x.op.name == anchor and x.it == i)
        b = next(k for k, x in enumerate(sched) if x.op.name == anchor and x.it == i + 1)
        return [(x.op, 0 if x.it < 0 else i - x.it) for x in sched[a:b]], sched[b].t - sched[a].t
    b1, c1 = cut(it)
    b2, c2 = cut(it + 1)
    same = [(o.name, s) for o, s in b1] == [(o.name, s) for o, s in b2]
    return b1, c1, same


def live_masks(ops, vsize, cyclic, persistent=(), liveout=()):
    n = len(ops)
    full = (1 << n) - 1
    acc = {}
    for i, o in enumerate(ops):
        for r in o.uses:
            if r[0].startswith("%"):
                acc.setdefault(r, []).append((i, 0, o))
        for r in o.defs:
            if r[0].startswith("%"):
                acc.setdefault(r, []).append((i, 1, o))
    end = Ins("s_nop 0")
    for r in liveout:
        acc.setdefault(r, []).append((n, 0, end))
    masks = {}

    def span(a, b):
        if b - a + 1 >= n:
            return full
        m = 0
        for k in range(a, b + 1):
            if cyclic:
                m |= 1 << (k % n)
            elif k < n:
                m |= 1 << k
        return m

    for r, lst in acc.items():
        if r[0][1:] in persistent or (cyclic and not any(d for _, d, _ in lst)):
            masks[r] = full
            continue
        m = 0
        seq = lst + ([(i + n, d, o) for i, d, o in lst] if cyclic else [])
        lastdef = None if cyclic else -1
        for (i, d, o) in seq:
            if d:
                lastdef = i
                m |= span(i, i + (9 if o.kind == "mfma" else 0))
            elif lastdef is not None:
                extra = 3 if (o.kind == "mfma" and r in o.srcC) else 2 if (o.kind == "vst" and r in o.data) else 0
                end = i + extra if extra or o.kind == "mfma" or o.mn == "macro" else i - 1
                if end >= lastdef:
                    m |= span(max(lastdef, 0), end)
        masks[r] = m
    for o_i, o in enumerate(ops):
        if o.kind in ("dsr", "vld") and o.defs[0][0].startswith("%"):
            first = None if cyclic else n
            for k in range(1, n):
                p = ops[(o_i + k) % n] if cyclic else (ops[o_i + k] if o_i + k < n else None)
                if p is None:
                    break
                if p.kind != "label" and (p.uset | p.dset) & o.dset:
                    first = o_i + k
                    break
            if first is not None:
                for r in o.defs:
                    masks[r] |= span(o_i, first)
    return masks


def allocate(ops, vsize, pool, cyclic, persistent=(), fixed=None, tries=400, seed=0, liveout=(), preocc=None):
    masks = live_masks(ops, vsize, cyclic, persistent, liveout)
    names = sorted({r[0][1:] for r in masks})
    el = {nm: [masks.get(("%" + nm, i), 0) for i in range(vsize[nm])] for nm in names}
    n = len(ops)
    press = [sum((m >> k) & 1 for m in masks.values()) for k in range(n)]
    poolset = set(pool)
    rnd = random.Random(seed)
    weight = {nm: sum(bin(m).count("1") for m in el[nm]) for nm in names}
    full = (1 << n) - 1
    union = {nm: 0 for nm in names}
    for nm in names:
        for m in el[nm]:
            union[nm] |= m
    peak = press.index(max(press))
    if max(press) > len(pool):
        live = {}
        for r, m in masks.items():
            if (m >> peak) & 1:
                live[r[0]] = live.get(r[0], 0) + 1
        raise RuntimeError(f"pressure {max(press)} at {peak}/{n} ({ops[peak]}): {live}")

    def rot(m, k):
        return ((m >> k) | (m << (n - k))) & full

    boost = {}
    for tr in range(tries):
        if tr % 40 == 0:
            boost = {}
            cut0, jit0 = (peak if tr < 80 else rnd.randrange(n)), rnd.choice((0, 4, 12))
        occ = {p: (preocc or {}).get(p, 0) for p in pool}
        res = {}
        for nm, b in (fixed or {}).items():
            if nm in el:
                res[nm] = b
                for i, m in enumerate(el[nm]):
                    if b + i in occ:
                        if occ[b + i] & m:
                            raise RuntimeError(f"fixed registers overlap: {nm}[{i}] at v{b + i}")
                        occ[b + i] |= m
        cut = cut0 if cyclic else 0
        back = (not cyclic) and (tr // 40) % 2 == 0
        jit = jit0

        def key(nm):
            u = rot(union[nm], cut)
            if back:
                return (1, -u.bit_length() + rnd.uniform(0, jit) - 40 * boost.get(nm, 0))
            if u & 1:
                return (0, -boost.get(nm, 0), -vsize[nm], -weight[nm] * rnd.uniform(0.9, 1.1))
            return (1, (u & -u).bit_length() + rnd.uniform(0, jit) - 40 * boost.get(nm, 0))
        ok = True
        for nm in sorted(names, key=key):
            if nm in res:
                continue
            k = vsize[nm]
            best, bs = None, None
            for b in pool:
                if k > 1 and b % 2:
                    continue
                if all((b + i) in poolset and not (occ[b + i] & el[nm][i]) for i in range(k)):
                    sc = 0
                    for i in range(k):
                        m = el[nm][i]
                        if not m or m == full:
                            continue
                        e = rot(m, cut).bit_length()
                        after = rot(occ[b + i], cut) >> e
                        sc += 0 if back else (after & -after).bit_length() if after else n
                    sc += (n // 8 if (k == 4 and b % 4) else 0) + b * 1e-3
                    if k < 4:
                        nb = [p for p in range(b & ~3, (b & ~3) + 4) if p in occ and not (b <= p < b + k)]
                        sc += sum(0 if occ[p] & union[nm] else n // 4 for p in nb)
                    if bs is None or sc < bs:
                        best, bs = b, sc
            if best is None:
                ok = False
                boost[nm] = boost.get(nm, 0) + 1
                break
            res[nm] = best
            for i in range(k):
                occ[best + i] |= el[nm][i]
        if ok:
            return res, max(press)
    live = {}
    for r, m in masks.items():
        if (m >> peak) & 1 and m != full:
            live[r[0]] = live.get(r[0], 0) + 1
    print(live, boost)
    raise RuntimeError(f"register allocation failed: max pressure {max(press)} at {press.index(max(press))}/{n}, pool {len(pool)}")


def substitute(text, alloc, vsize):
    def f(m):
        nm, a, b = m.group(1), m.group(2), m.group(3)
        base = alloc[nm]
        if a is None:
            lo, hi = base, base + vsize[nm] - 1
        elif b is None:
            lo = hi = base + int(a)
        else:
            lo, hi = base + int(a), base + int(b)
        return f"v{lo}" if lo == hi else f"v[{lo}:{hi}]"
    return _VSUB.sub(f, text)


def check_dataflow(sched, alloc):
    cur = {}
    errs = 0
    for x in sched:
        if x.li < 0:
            continue
        for r in x.op.uses:
            if not r[0].startswith("%") and r in x.prod and cur.get(r) != x.prod[r].li:
                errs += 1
        for r in x.op.defs:
            if not r[0].startswith("%"):
                cur[r] = x.li
        for r in x.op.uses:
            if r[0].startswith("%") and r in x.prod:
                ph = alloc[r[0][1:]] + r[1]
                if cur.get(ph) != (x.prod[r].li, r):
                    errs += 1
        for r in x.op.defs:
            if r[0].startswith("%"):
                cur[alloc[r[0][1:]] + r[1]] = (x.li, r)
    return errs


def prune_nops(seq, cyclic, prefix=()):
    seq = list(seq)
    i = 0
    while i < len(seq):
        if seq[i].name == "_nop":
            trial = seq[:i] + seq[i + 1:]
            n = len(trial)
            if cyclic:
                ctx = [trial[k % n] for k in range(i - 12, i + 12)]
            else:
                ctx = (list(prefix) + trial[:i])[-12:] + trial[i:i + 12]
            if not check_hazards(ctx):
                seq = trial
                continue
        i += 1
    out = []
    for o in seq:
        if o.kind == "nop" and out and out[-1].kind == "nop" and out[-1].slots + o.slots <= 16:
            out[-1] = Ins(f"s_nop {out[-1].slots + o.slots - 1}")
        else:
            out.append(o)
    return out


def live_in(ops):
    seen, res = set(), set()
    for o in ops:
        if o.kind == "label":
            continue
        res |= {r for r in o.uses if r[0].startswith("%") and r not in seen}
        seen |= {r for r in o.defs}
    return res


def reorder(ops, groups, attr="act"):
    import heapq
    pos = {g: i for i, g in enumerate(groups)}
    byname = {o.name: i for i, o in enumerate(ops)}
    succ = [set() for _ in ops]
    npred = [0] * len(ops)
    lastw, readers = {}, {}
    glue = {}
    for i, o in enumerate(ops):
        pr = set()
        for r in o.uses:
            if r in lastw:
                pr.add(lastw[r])
                if r in FLAGS:
                    glue.setdefault(lastw[r], []).append(i)
        for r in o.defs:
            if r in FLAGS:
                continue
            if r in lastw:
                pr.add(lastw[r])
            pr.update(readers.get(r, ()))
        pr.update(byname[n] for n, d in o.deps if d == 0)
        pr.discard(i)
        for p in pr:
            succ[p].add(i)
        npred[i] = len(pr)
        for r in o.uses:
            readers.setdefault(r, []).append(i)
        for r in o.defs:
            lastw[r] = i
            readers[r] = []
    preds = [set() for _ in ops]
    for p, ss in enumerate(succ):
        for i in ss:
            preds[i].add(p)
    for p, cons in glue.items():
        for c in cons:
            for q in preds[c]:
                if q != p and q not in cons and q not in preds[p]:
                    succ[q].add(p)
                    preds[p].add(q)
                    npred[p] += 1
    glued = {c for cons in glue.values() for c in cons}
    key = [(-1 if i in glued else pos[o.attr[attr]], i) for i, o in enumerate(ops)]
    heap = [key[i] for i in range(len(ops)) if npred[i] == 0]
    heapq.heapify(heap)
    out = []
    while heap:
        _, i = heapq.heappop(heap)
        out.append(ops[i])
        for j in succ[i]:
            npred[j] -= 1
            if npred[j] == 0:
                heapq.heappush(heap, key[j])
    assert len(out) == len(ops)
    return out


def pressure(ops, vsize, cyclic, persistent=(), liveout=()):
    masks = live_masks(ops, vsize, cyclic, persistent, liveout)
    n = len(ops)
    cnt = [0] * n
    for m in masks.values():
        b = bin(m)[2:][::-1]
        for k, ch in enumerate(b):
            if ch == "1":
                cnt[k] += 1
    return cnt
```

```python
from asmlib import Ins

RING = 20480
LDS_TOTAL = 163840
E_REC = 336
E_HEAD = 16 * E_REC
L_E = LDS_TOTAL - 4 * E_HEAD
E_JUMP = -5 * E_HEAD
L_LN = 4 * RING
L_EO = L_LN + 6144
L_STG = 3 * RING
L_MEAN = 4608
L_TAB = 2 * RING + 3072

S_X, S_OUT = 24, 28
S_TAU, S_EPSQ, S_EPSL, S_SQ = 40, 41, 42, 43
S_B = 44
S_D = 48
S_T = 53
S_WOFF = 54
S_SO = 56
S_K, S_STA, S_STB, S_IT = 61, 62, 63, 65
S_M0, S_MP, S_NS, S_NP = 69, 70, 71, 73
S_R = 4
S_TK, S_AEN, S_U, S_V, S_MSK, S_REP = 12, 13, 14, 15, 64, 66
S_DBG = 8
S_DM = 67
S_TAU2, S_TAU4, S_TINY = 55, 52, 39
NBYTES = 100270464


def wq(j, s): return 4 * (6 * j + s)
def areg(b): return f"a[{b}:{b + 3}]"
def WQ(j, s): return areg(wq(j, s))
def WK(j, s): return areg(72 + wq(j, s))
def WV(j, s): return areg(144 + wq(j, s))
def WO(j, s):
    k = 6 * j + s
    return areg(216 + 4 * k) if k < 10 else f"v[{224 + 4 * (k - 10)}:{224 + 4 * (k - 10) + 3}]"


PERSIST = dict(ONES=4, SEL=4, SELH=4, BT=4, aF0=1, aF1=1, aW1=1, aW2=1, aL=1, aE1=1, aE2=1, aNw=1, aNr=1,
               g0=1, g1=1, g2=1, g3=1, g4=1, GD=1, TK=1)
for _q in range(3):
    for _k in range(3):
        PERSIST[f"B{_q}{_k}"] = 4
E_Q, E_QH, E_K, E_KH, E_V = 0, 16, 32, 48, 56


class Prog:
    def __init__(self):
        self.vs = dict(PERSIST)
        self.ops = []
        self.stage = 0
        self.auto = 0
        self.pre = ""
        self.act = "G"
        self.grp = None
        self.ntmp = 0

    def t(self, size=1):
        self.ntmp += 1
        return self.v(f"t{self.pre}{self.ntmp}", size)

    def many(self, text, **kw):
        last = None
        for line in text.strip().split("\n"):
            line = line.split(";")[0].strip()
            if line:
                last = self(line, **kw)
        return last

    def adopt(self, src, items, have=None):
        self.vs.update(src.vs)
        have = have or {(o.name, u) for o, u in items}
        for o, u in items:
            deps = [(f"{n}@{u + d}", 0) for n, d in o.deps if (n, u + d) in have]
            self(o.text, name=f"{o.name}@{u}", stage=o.stage, deps=deps, pub=o.pub, need=o.need,
                 chain=None if o.chain is None else f"{o.chain}@{u}",
                 **{k: v for k, v in o.attr.items() if not (k == "lat" and o.kind == "barrier") and k != "brk"})

    def v(self, name, size):
        if name in self.vs:
            assert self.vs[name] == size
        self.vs[name] = size
        return "%" + name

    def __call__(self, text, name=None, **kw):
        if name is None:
            self.auto += 1
            name = f"i{self.pre}{self.auto}"
        kw.setdefault("stage", self.stage)
        kw.setdefault("act", self.act)
        kw.setdefault("grp", self.grp or self.act)
        o = Ins(text, self.vs, name=name, **kw)
        if kw.get("as_salu"):
            o.kind = "salu"
        self.ops.append(o)
        return name


M32 = "v_mfma_f32_16x16x32_bf16"
M16 = "v_mfma_f32_16x16x16_bf16"
H32 = "v_mfma_f32_16x16x32_f16"


def frag_reads(P, pre, t, ad="%aF", base=0, **kw):
    names = []
    for s in range(6):
        x = P.v(f"{pre}{t}{s}", 4)
        names.append(P(f"ds_read_b128 {x}, {ad}{s & 1} offset:{base + 1536 * t + 128 * (s >> 1)}", name=f"rd{pre}{t}{s}", **kw))
    return names


def chain(P, acc, W, j, xpre, t, swap=False, **kw):
    a = P.v(acc, 4)
    for s in range(6):
        x = f"%{xpre}{t}{s}"
        A, B = (x, W(j, s)) if swap else (W(j, s), x)
        P(f"{M32} {a}, {A}, {B}, {'0' if s == 0 else a}", name=f"m{acc}{s}", chain=acc, **kw)


def sumsq(P, dst, acc, first, eps):
    d = P.v(dst, 1)
    for r in range(4):
        if first and r == 0:
            P(f"v_fma_f32 {d}, %{acc}[0], %{acc}[0], s{eps}")
        else:
            P(f"v_fmac_f32 {d}, %{acc}[{r}], %{acc}[{r}]")


def scale_pack(P, acc, rs, dst, off, ty="bf16"):
    for k in range(2):
        P(f"v_mul_f32 %{acc}[{2 * k}], %{acc}[{2 * k}], {rs}")
        P(f"v_mul_f32 %{acc}[{2 * k + 1}], %{acc}[{2 * k + 1}], {rs}")
        P(f"v_cvt_pk_{ty}_f32 {dst}[{off + k}], %{acc}[{2 * k}], %{acc}[{2 * k + 1}]")


def pack(P, acc, dst, off, ty="bf16"):
    for k in range(2):
        P(f"v_cvt_pk_{ty}_f32 {dst}[{off + k}], %{acc}[{2 * k}], %{acc}[{2 * k + 1}]")


def qk_chains(P, t, hook=None):
    for nm, W in (("Q", WQ), ("K", WK)):
        for j in range(3):
            chain(P, f"A{nm}{t}{j}", W, j, "X", t)
            if hook:
                hook(nm, j)
            sumsq(P, f"ss{nm}{t}", f"A{nm}{t}{j}", j == 0, S_EPSQ)


def norm_reduce(P, t, nb):
    P(f"v_cvt_pk_bf16_f32 {nb}[2], %ssQ{t}, %ssK{t}")
    d = P.v(f"NR{t}", 4)
    P(f"{M16} {d}, %SEL[0:1], {nb}[2:3], 0", name=f"mNR{t}")
    P(f"v_rsq_f32 {d}[0], {d}[0]")
    P(f"v_rsq_f32 {d}[1], {d}[1]")
    P(f"v_mul_f32 {d}[0], s{S_TAU2}, {d}[0]")
    P(f"v_mul_f32 {d}[1], 0.5, {d}[1]")


def write_names(nm, mode):
    return [nm + k for k in {128: "ab", 64: "abc", 32: "abcdef"}[mode]]


def tile_write(P, lo, hi, t, nm, mode=128, ad="%aW", **kw):
    n = write_names(nm, mode)
    if mode == 128:
        P(f"ds_write_b128 {ad}1, {lo} offset:{1536 * t}", name=n[0], **kw)
        P(f"ds_write_b64 {ad}2, {hi} offset:{1536 * t}", name=n[1], **kw)
    elif mode == 64:
        P(f"ds_write_b64 {ad}1, {lo}[0:1] offset:{1536 * t}", name=n[0], **kw)
        P(f"ds_write_b64 {ad}1, {lo}[2:3] offset:{1536 * t + 8}", name=n[1], **kw)
        P(f"ds_write_b64 {ad}2, {hi} offset:{1536 * t}", name=n[2], **kw)
    else:
        for k in range(4):
            P(f"ds_write_b32 {ad}1, {lo}[{k}] offset:{1536 * t + 4 * k}", name=n[k], cost=32, **kw)
        for k in range(2):
            P(f"ds_write_b32 {ad}2, {hi}[{k}] offset:{1536 * t + 4 * k}", name=n[4 + k], cost=16, **kw)
    return n


def xgroup_max(P, m, tmp, op="v_max_f32"):
    for sw in ("v_permlane32_swap_b32", "v_permlane16_swap_b32"):
        P(f"v_mov_b32 {tmp}, {m}")
        P(f"{sw} {tmp}, {m}")
        P(f"{op} {m}, {tmp}, {m}")


def qk_dst(P, nm, t, j):
    if nm == "K":
        return P.v(f"K{t}", 6), 2 * j
    return (P.v(f"Qlo{t}", 4), 2 * j) if j < 2 else (f"%QZ{t}", 2)


def v_dst(t, j):
    return (f"%V1{j}", 2 * t) if t < 2 else (f"%V2{j}", 0)


def h_chain(P, nm, t, j, xpre, nb, hook=None, dst=qk_dst, pre="A"):
    ss = f"{nb}[{2 * (t & 1) + (nm == 'K')}]"
    if xpre:
        chain(P, f"{pre}{nm}{t}{j}", WQ if nm == "Q" else WK, j, xpre, t)
    if hook:
        hook()
    r, o = dst(P, nm, t, j)
    pack(P, f"{pre}{nm}{t}{j}", r, o, "f16")
    for k in range(2):
        if j == 0 and k == 0:
            P(f"v_pk_fma_f16 {ss}, {r}[{o}], {r}[{o}], s{S_TINY}")
        else:
            P(f"v_pk_fmac_f16 {ss}, {r}[{o + k}], {r}[{o + k}]")


def h_reduce(P, tiles, nb, pre="NR"):
    d = P.v(f"{pre}{tiles[0]}", 4)
    P(f"{H32} {d}, %SELH, {nb}, 0", name=f"m{pre}{tiles[0]}")
    st = []
    for i, t in enumerate(tiles):
        st.append(P(f"v_or3_b32 %GD, %GD, {d}[{2 * i}], {d}[{2 * i + 1}]"))
        P(f"v_rsq_f32 {d}[{2 * i}], {d}[{2 * i}]")
        P(f"v_rsq_f32 {d}[{2 * i + 1}], {d}[{2 * i + 1}]")
        P(f"v_mul_f32 {d}[{2 * i}], s{S_TAU4}, {d}[{2 * i}]")
        P(f"v_cvt_pk_f16_f32 {d}[{2 * i}], {d}[{2 * i}], {d}[{2 * i + 1}]")
    return st


def h_scale(P, t, nm, dst=qk_dst, pre="NR"):
    d = f"%{pre}{t & 2}[{2 * (t & 1)}]"
    sel = "op_sel:[0,0] op_sel_hi:[1,0]" if nm == "Q" else "op_sel:[0,1] op_sel_hi:[1,1]"
    for j in range(3):
        r, o = dst(P, nm, t, j)
        for k in range(2):
            P(f"v_pk_mul_f16 {r}[{o + k}], {r}[{o + k}], {d} {sel}")


def loop_program(safe_max=False, opt=None):
    opt = opt or {}
    P = Prog()
    ALW = -9
    P.v("P2", 4)
    for j in range(3):
        P.v(f"V1{j}", 4)
        P.v(f"V2{j}", 4)
    for t in range(3):
        for j in range(3):
            P.v(f"Y{t}{j}", 4)
    stateful = []

    def S(text, **kw):
        n = P(text, stage=ALW, **kw)
        stateful.append(n)
        return n

    vm_names = [f"dma{j}" for j in range(5)] + [f"st{j}" for j in range(5)]
    ofr = [f"rdOF{t}{s}" for t in range(3) for s in range(6)]
    wm = opt.get("wm", 64)
    f16 = not safe_max
    b3 = opt.get("b3", False)
    owr = [n for t in range(3) for n in write_names(f"wO{t}", wm)]
    for t in range(3):
        P.v(f"QZ{t}", 4)
    P.v("EQZ", 4)


    S(f"s_mov_b32 s{S_T}, s{S_B + 3}")
    S(f"s_mov_b32 s{S_B + 3}, s{S_B + 2}")
    S(f"s_mov_b32 s{S_B + 2}, s{S_B + 1}")
    S(f"s_mov_b32 s{S_B + 1}, s{S_B}")
    S(f"s_mov_b32 s{S_B}, s{S_T}")
    S(f"s_sub_u32 s{S_D}, s{S_B}, s{S_B + 2}")
    S(f"v_add_u32 %aF0, s{S_D}, %aF0")
    S(f"v_add_u32 %aF1, s{S_D}, %aF1")
    P.early = list(stateful)
    if b3:
        P("s_waitcnt vmcnt(10)", name="wB3", stage=ALW, as_salu=True, deps=[(n, -1) for n in vm_names])
        P("s_barrier", name="B3", stage=ALW, deps=[("wB3", 0)])
    xbar = ("B3", 0) if b3 else ("B2", -1)

    xr = []
    ywr = []
    first_m = "mAK000" if (f16 and opt.get("kfirst")) else "mAQ000"

    def l_part1():
        P.stage = -2
        for t in range(3):
            for j in range(3):
                sumsq(P, f"ssY{t}", f"Y{t}{j}", j == 0, S_EPSL)
        lp = P.v("LP", 2)
        P(f"v_cvt_pk_bf16_f32 {lp}[0], %ssY0, %ssY1")
        P("s_waitcnt vmcnt(10)", name="wTK", stage=ALW, as_salu=True, deps=[(n, -1) for n in vm_names] + [(first_m, 0), (P.ops[-6].name, 0)], tk=True)
        P(f"v_cvt_pk_bf16_f32 {lp}[1], %ssY2, %TK", deps=[("wTK", 0)])
        P(f"ds_write_b64 %aNw, {lp}", name="wLN", pub=["b1"], deps=[("B2", -1)])
        P("s_barrier", name="B1", stage=ALW, need=["b1"], deps=[("wLN", 0), xbar] + [(n, -1) for n in ofr + owr])
        S(f"s_sub_u32 s{S_D + 1}, s{S_B + 2}, s{S_B + 1}")
        S(f"v_add_u32 %aW1, s{S_D + 1}, %aW1", deps=[(first_m, 0)])
        S(f"v_add_u32 %aW2, s{S_D + 1}, %aW2", deps=[(first_m, 0)])
        for k in range(2):
            P(f"ds_read_b128 {P.v(f'LR{k}', 4)}, %aNr offset:{1024 * k}", name=f"rdLN{k}", deps=[("B1", 0)], pub=["b2"])
        P.stage = 0

    def l_part2():
        S(f"v_readfirstlane_b32 s{S_TK}, %LR0[1]", tk=True)
        S(f"s_lshr_b32 s{S_TK}, s{S_TK}, 23", tk=True)
        P.stage = -2
        d = P.v("LD", 4)
        P(f"{M32} {d}, %SEL, %LR0, 0", name="mLN0", chain="LN")
        P(f"{M32} {d}, %SEL, %LR1, {d}", name="mLN1", chain="LN")
        for t in range(3):
            P(f"v_rsq_f32 {d}[{t}], {d}[{t}]")
        for t in range(3):
            P(f"v_mul_f32 {d}[{t}], s{S_SQ}, {d}[{t}]")
        P.stage = 0

    def l_final(t):
        P.stage = -2
        lo, hi = P.v(f"Ylo{t}", 4), P.v(f"Yhi{t}", 2)
        scale_pack(P, f"Y{t}0", f"%LD[{t}]", lo, 0)
        scale_pack(P, f"Y{t}1", f"%LD[{t}]", lo, 2)
        scale_pack(P, f"Y{t}2", f"%LD[{t}]", hi, 0)
        ywr.extend(tile_write(P, lo, hi, t, f"wY{t}", wm, pub=["b2"]))
        P.stage = 0

    acts = dict(l1=l_part1, l2=l_part2, f0=lambda: l_final(0), f1=lambda: l_final(1), f2=lambda: l_final(2))
    if f16:
        acts.update(n0=lambda: stateful.extend(h_reduce(P, (0, 1), "%NB")), n2=lambda: stateful.extend(h_reduce(P, (2,), "%NB")))
        for t in range(3):
            for nm in "QK":
                acts[f"h{nm}{t}"] = lambda t=t, nm=nm: h_scale(P, t, nm)
        hooks = opt.get("hooks") or {"0Q0": "l1", "0K2": "l2", "0V1": "f0", "1Q1": "f1", "1K1": "f2", "1V0": "n0",
                                     "1V2": "hK0 hQ0", "2Q1": "hK1 hQ1", "2V0": "n2", "2V2": "hK2 hQ2"}
    else:
        hooks = {"0Q0": "l1", "0K2": "l2", "1Q0": "f0", "1K0": "f1", "2Q0": "f2"}

    def hook(t, nm, j):
        for a in hooks.get(f"{t}{nm}{j}", "").split():
            P.grp = a
            acts[a]()
        P.grp = f"p{nm}{t}{j}"

    for t in range(3):
        P.grp = f"X{t}"
        xr += frag_reads(P, "X", t, deps=[xbar], pub=["b2"])
        vdst = (lambda j: (f"%V1{j}", 2 * t)) if t < 2 else (lambda j: (f"%V2{j}", 0))
        if f16:
            nb = P.v("NB", 4)
            for nm in ("KQ" if opt.get("kfirst") else "QK"):
                for j in range(3):
                    P.grp = f"{nm}{t}{j}"
                    h_chain(P, nm, t, j, "X", nb, lambda: hook(t, nm, j))
            for j in range(3):
                P.grp = f"V{t}{j}"
                chain(P, f"AV{t}{j}", WV, j, "X", t, swap=True)
                hook(t, "V", j)
                pack(P, f"AV{t}{j}", *vdst(j))
            continue
        qk_chains(P, t, lambda nm, j: hook(t, nm, j))
        chain(P, f"AV{t}0", WV, 0, "X", t, swap=True)
        norm_reduce(P, t, "%P2")
        pack(P, f"AV{t}0", *vdst(0))
        chain(P, f"AV{t}1", WV, 1, "X", t, swap=True)
        pack(P, f"AV{t}1", *vdst(1))
        chain(P, f"AV{t}2", WV, 2, "X", t, swap=True)
        for nm in (("K", "Q") if t == 2 else ("Q", "K")):
            for j in range(3):
                scale_pack(P, f"A{nm}{t}{j}", f"%NR{t}[{int(nm == 'K')}]", *qk_dst(P, nm, t, j), "f16")
        pack(P, f"AV{t}2", *vdst(2))

    P.grp = "B2"
    if not b3:
        P("s_waitcnt vmcnt(0)", name="wB2", stage=ALW, as_salu=True, deps=[(n, -1) for n in vm_names] + [(n, 0) for n in xr + ywr])
        ywr.append("wB2")
    P("s_barrier", name="B2", stage=ALW, need=["b2"], deps=[(n, 0) for n in xr + ywr + ["rdLN0", "rdLN1", "B1"]])
    S(f"s_sub_u32 s{S_D + 2}, s{S_B + 1}, s{S_B}")
    S(f"v_add_u32 %aF0, s{S_D + 2}, %aF0")
    S(f"v_add_u32 %aF1, s{S_D + 2}, %aF1")
    S(f"v_add_u32 %aW1, s{S_D}, %aW1")
    S(f"v_add_u32 %aW2, s{S_D}, %aW2")
    S(f"s_sub_u32 s{S_D + 3}, s{S_B + 2}, s{S_B + 3}")
    S(f"v_add_u32 %aL, s{S_D + 3}, %aL")
    for k in (4, 3, 2, 1):
        S(f"s_mov_b32 s{S_SO + k}, s{S_SO + k - 1}")
    for k in (3, 2, 1):
        S(f"s_mov_b32 s{S_R + k}, s{S_R + k - 1}")
    S(f"s_sub_u32 s{S_U}, s{S_R + 2}, s{S_R + 3}")
    S(f"v_add_u32 %aE1, s{S_U}, %aE1")
    S(f"v_add_u32 %aE2, s{S_U}, %aE2")
    if safe_max:
        S(f"v_add_u32 %GD, s{S_U}, %GD")
    S(f"s_add_u32 s{S_K}, s{S_K}, 1")
    if safe_max:
        S(f"s_ff1_i32_b32 s{S_V}, s{S_REP}")
        S(f"s_cmp_lg_u32 s{S_REP}, 0")
        S(f"s_cselect_b32 s{S_TK}, s{S_V}, s{S_TK}")
        S(f"s_cmp_lt_u32 s{S_K}, s{S_NS}")
        S(f"s_cselect_b32 s{S_V}, 31, s{S_V}")
        S(f"s_bitset0_b32 s{S_REP}, s{S_V}")
    S(f"s_add_u32 s{S_TK}, s{S_TK}, 20")
    S(f"s_max_u32 s{S_TK}, s{S_TK}, s{S_K}")
    S(f"s_cmp_lt_u32 s{S_K}, s{S_NS}")
    S(f"s_cselect_b32 s{S_V}, s{S_K}, s{S_TK}")
    S(f"s_cselect_b32 s{S_SO}, s{S_M0}, s{S_MP}")
    S(f"s_add_u32 s{S_SO}, s{S_SO}, s{S_V}")
    S(f"s_mul_i32 s{S_T}, s{S_SO}, 58255")
    S(f"s_lshr_b32 s{S_T}, s{S_T}, 22")
    S(f"s_mul_i32 s{S_T}, s{S_T}, s{S_STB}")
    S(f"s_mul_i32 s{S_SO}, s{S_SO}, s{S_STA}")
    S(f"s_add_u32 s{S_SO}, s{S_SO}, s{S_T}")
    S(f"s_mul_i32 s{S_R}, s{S_V}, {E_REC}")
    S(f"s_cmp_ge_u32 s{S_V}, 16")
    S(f"s_cselect_b32 s{S_T}, {E_JUMP}, 0")
    S(f"s_add_u32 s{S_R}, s{S_R}, s{S_T}")
    S(f"s_cmp_lt_u32 s{S_V}, s{S_NP}")
    S(f"s_cselect_b32 s{S_X + 2}, {NBYTES}, 0")
    S(f"s_cselect_b32 s{S_SO}, s{S_SO}, 0")
    S(f"s_cselect_b32 s{S_R}, s{S_R}, -1")
    S(f"s_cselect_b32 s{S_V}, s{S_V}, 0")
    S(f"s_cselect_b32 s{S_AEN}, s{S_AEN}, -1")
    S(f"s_bitset1_b32 s{S_MSK}, s{S_V}")
    tg = "S" if safe_max else "F"
    S(f"s_cmp_ge_u32 s{S_K}, s{S_AEN}", tk=True, deps=[("B2", 0)])
    S(f";! %TK | %aNr, scc\n    s_cbranch_scc1 L_atom{tg}@W\nL_atomr{tg}@W:\n;!OUT\nL_atom{tg}@W:\n    v_mov_b32 %TK, 0x800000\n"
      f"    buffer_atomic_add %TK, %aNr, s[{S_DBG}:{S_DBG + 3}], 0 offen sc0 sc1\n    s_branch L_atomr{tg}@W", name="atom", as_salu=True, tk=True, hold=12, cost=1)
    S(f"s_add_u32 s{S_IT}, s{S_IT}, 1")
    S(f"s_cmp_ge_i32 s{S_IT}, 2")
    S(f"s_cselect_b32 s{S_OUT + 2}, {NBYTES}, 0")
    S(f"s_add_u32 s{S_DM}, s{S_B + 2}, s{S_WOFF}")

    def r_reads(t):
        P.stage = -1
        frag_reads(P, "OF", t, deps=[("B1", 0)], pub=["b1"])
        P.stage = 0

    def r_chain(t, j):
        P.stage = -1
        chain(P, f"Y{t}{j}", WO, j, "OF", t)
        P.stage = 0

    def out_piece(j):
        z = P.v(f"Z{j}", 4)
        P(f"ds_read_b128 {z}, %aL offset:{1024 * j}", name=f"rb{j}", stage=-2, deps=[("B2", 0)], pub=[f"rb{j}"])
        S(f"s_add_u32 m0, s{S_DM}, {1024 * j}")
        prev = [(f"st{j - 1}", 0)] if j else [("atom", 0)]
        stateful.append(P(f"buffer_load_dwordx4 %g{j}, s[{S_X}:{S_X + 3}], s{S_SO} offen nt lds", name=f"dma{j}", stage=2,
                          need=[f"rb{j}"], deps=[(f"rb{j}", 0)] + prev, lat=opt.get("dmalat", 112)))
        stateful.append(P(f"buffer_store_dwordx4 {z}, %g{j}, s[{S_OUT}:{S_OUT + 3}], s{S_SO + 4} offen {opt.get('stflag', 'sc1')}",
                          name=f"st{j}", stage=-2, deps=[(f"dma{j}", 0)]))

    def e_reads():
        P.v("EK", 6)
        P(f"ds_read_b128 %EK[0:3], %aE1 offset:{E_K}", name="rdEK")
        P(f"ds_read_b64 %EK[4:5], %aE1 offset:{E_KH}", name="rdEKH")

    def eq_reads():
        P(f"ds_read_b128 {P.v('EQ', 4)}, %aE1 offset:{E_Q}", name="rdEQ")
        P(f"ds_read_b64 %EQZ[2:3], %aE1 offset:{E_QH}", name="rdEQH")

    def ev_reads():
        for j in range(3):
            P(f"ds_read_u16 %V2{j}[2], %aE2 offset:{E_V + 8 * j}", name=f"rdEV{j}")

    def s_tile(q, k):
        if k < 3:
            s, kk, c = P.v(f"S{q}{k}", 4), f"%K{k}", f"%B{q}{k}"
        else:
            s, kk, c = P.v(f"SE{q}", 4), "%EK", "%BT"
        P(f"{H32} {s}, {kk}[0:3], %Qlo{q}, {c}", name=f"mS{q}{k}a", chain=f"S{q}{k}")
        P(f"{H32} {s}, {kk}[2:5], %QZ{q}, {s}", name=f"mS{q}{k}b", chain=f"S{q}{k}")

    def s_tiles(q):
        for k in range(4):
            P.grp = f"s{q}{k}"
            s_tile(q, k)
        P.grp = None

    def softmax(q):
        p1 = P.v(f"P1{q}", 4)
        regs = [f"%S{q}{k}[{r}]" for k in range(3) for r in range(4)] + [f"%SE{q}[{q}]"]
        if safe_max:
            m, tmp = P.v(f"mx{q}", 1), P.v(f"mt{q}", 1)
            P(f"v_max3_f32 {m}, {regs[0]}, {regs[1]}, {regs[2]}")
            for k in range(3, 13, 2):
                P(f"v_max3_f32 {m}, {m}, {regs[k]}, {regs[k + 1]}")
            xgroup_max(P, m, tmp)
            for r in regs:
                P(f"v_sub_f32 {r}, {r}, {m}")
        for k in range(3):
            P.grp = f"x{q}{k}"
            for r in range(4):
                P(f"v_exp_f32 %S{q}{k}[{r}], %S{q}{k}[{r}]")
            pack(P, f"S{q}{k}", p1 if k < 2 else "%P2", 2 * k if k < 2 else 0)
        P(f"v_exp_f32 {regs[12]}, {regs[12]}")
        P(f"v_cvt_pk_bf16_f32 %P2[2], {regs[12]}, 0")
        P.grp = None

    def pv(q):
        sm = P.v(f"SM{q}", 4)
        P(f"{M32} {sm}, %ONES, %P1{q}, 0", name=f"mSM{q}a", chain=f"SM{q}")
        P(f"{M32} {sm}, %ONES, %P2, {sm}", name=f"mSM{q}b", chain=f"SM{q}")
        for j in range(3):
            o = P.v(f"O{q}{j}", 4)
            P(f"{M32} {o}, %V1{j}, %P1{q}, 0", name=f"mO{q}{j}a", chain=f"O{q}{j}")
            P(f"{M32} {o}, %V2{j}, %P2, {o}", name=f"mO{q}{j}b", chain=f"O{q}{j}")

    def o_out(q):
        P(f"v_rcp_f32 %SM{q}[0], %SM{q}[0]")
        lo, hi = P.v(f"Olo{q}", 4), P.v(f"Ohi{q}", 2)
        scale_pack(P, f"O{q}0", f"%SM{q}[0]", lo, 0)
        scale_pack(P, f"O{q}1", f"%SM{q}[0]", lo, 2)
        scale_pack(P, f"O{q}2", f"%SM{q}[0]", hi, 0)
        tile_write(P, lo, hi, q, f"wO{q}", wm, pub=["b1"], deps=[("B2", 0)])

    nT = 4 if safe_max else 3

    def eq_logits():
        eq_reads()
        for k in range(nT):
            kk = f"%K{k}" if k < 3 else "%EK"
            P(f"{H32} {P.v(f'T{k}', 4)}, %EQ, {kk}[0:3], %BT", name=f"mT{k}a", chain=f"T{k}")
            P(f"{H32} %T{k}, %EQZ, {kk}[2:5], %T{k}", name=f"mT{k}b", chain=f"T{k}")

    def eq_softmax():
        for k in range(1, nT):
            P(f"v_mov_b32_dpp %T0[3], %T{k}[3] quad_perm:[0,1,2,3] row_mask:0x{1 << k:x} bank_mask:0xf")
        if safe_max:
            m, tmp = P.v("mxE", 1), P.v("mtE", 1)
            P(f"v_mov_b32 {m}, %T0[3]")
            for sh in (8, 4, 2, 1):
                P(f"v_max_f32_dpp {m}, {m}, {m} row_ror:{sh} row_mask:0xf bank_mask:0xf")
            xgroup_max(P, m, tmp)
            P(f"v_sub_f32 %T0[3], %T0[3], {m}")
        P("v_exp_f32 %T0[3], %T0[3]")
        P("v_cvt_pk_bf16_f32 %T0[3], %T0[3], %T0[3]")
        stateful.append(P(f"ds_write_b16 {'%GD' if safe_max else '%aE2'}, %T0[3]", name="wPE", deps=[("rdEQ", 0), ("rdEQH", 0)]))
        P(f"ds_read_b128 {P.v('PE1', 4)}, %aE1", name="rdPE1", deps=[("wPE", 0)], look=99)
        P(f"ds_read_b128 {P.v('PE2', 4)}, %aE1 offset:16", name="rdPE2", deps=[("wPE", 0)], look=99)

    def eq_pv():
        for j in range(3):
            o = P.v(f"U{j}", 4)
            P(f"{M32} {o}, %PE1, %V1{j}, 0", name=f"mU{j}a", chain=f"U{j}")
            P(f"{M32} {o}, %PE2, %V2{j}, {o}", name=f"mU{j}b", chain=f"U{j}")

    def eq_out():
        for k in range(1, 3):
            P(f"v_mov_b32_dpp %U0[3], %U{k}[3] quad_perm:[0,1,2,3] row_mask:0x{1 << k:x} bank_mask:0xf")
        P("v_cvt_pk_bf16_f32 %U0[3], %U0[3], %U0[3]")
        stateful.append(P(f"ds_write_b16 %aE2, %U0[3] offset:{E_V}", name="wOE", deps=[(f"rdEV{j}", 0) for j in range(3)]))

    seq = opt.get("aseq") or ("o0 o1 rr0 r00 o2 r01 er o3 r02 s0 ev x0 o4 eql eqs rr1 r10 s1 pv0 x1 oo0 r11 eqp eqo r12 "
                              "s2 pv1 x2 oo1 rr2 r20 r21 r22 pv2 oo2").split()
    if safe_max:
        seq = ("rr0 r00 r01 er o0 r02 s0 ev x0 eql eqs o1 rr1 r10 pv0 s1 oo0 x1 o2 r11 eqp eqo r12 pv1 s2 oo1 x2 o3 rr2 r20 o4 "
               "r21 r22 pv2 oo2").split()
    P.grp = None
    for a in seq:
        P.act = a
        if a.startswith("rr"): r_reads(int(a[2]))
        elif a[0] == "r": r_chain(int(a[1]), int(a[2]))
        elif a == "er": e_reads()
        elif a == "ev": ev_reads()
        elif a == "eql": eq_logits()
        elif a == "eqs": eq_softmax()
        elif a == "eqp": eq_pv()
        elif a == "eqo": eq_out()
        elif a.startswith("oo"): o_out(int(a[2]))
        elif a[0] == "o": out_piece(int(a[1]))
        elif a[0] == "s": s_tiles(int(a[1]))
        elif a[0] == "x": softmax(int(a[1]))
        elif a.startswith("pv"): pv(int(a[2]))
        else: raise ValueError(a)
    anchor = next(o for o in P.ops if o.kind == "mfma")
    for o in P.ops:
        if o.kind == "barrier" and opt.get("stag") and not safe_max:
            o.attr["lat"] = 16 * max(opt["stag"]) + 12
    anchor.attr["brk"] = 28
    P.anchor = anchor.name
    P.stateful = stateful
    anchor.deps += [(n, -1) for n in stateful + ["B1", "B2"]]
    return P
```

```python
import sys
import struct
from asmlib import *
from body import *

KNAME = "standalone__window_attn_swin_v2__vision_kernel"
PITCH = 196224
LOG2E = 1.4426950408889634
S_W, S_WOD = 32, 76
S_H, S_SO0, S_MASKW = 68, 72, 74
OOB = 0x40000000
LS_FAST = 0x406C
POOL = list(range(0, 224))
VERB = 'verb' in sys.argv
ZERO_ELEMS = [("P2", 3), ("V20", 3), ("V21", 3), ("V22", 3)] + [(n, k) for n in ("QZ0", "QZ1", "QZ2", "EQZ") for k in range(2)]


def slot(u):
    return 12288 * (u % 6)


TOP = {}
_r = 224
for _n in [n for n in PERSIST if PERSIST[n] == 4] + ["P2", "V20", "V21", "V22", "QZ0", "QZ1", "QZ2", "EQZ"]:
    _r -= 4
    TOP[_n] = _r
for _n in [n for n in PERSIST if PERSIST[n] == 1]:
    _r -= 1
    TOP[_n] = _r


HSCHED = dict(look_m=24, look_d=14, look_v=80, vm_gap=32, vm_first=1200, vm_rate=80, vm_q=9)
TSCHED = dict(look_m=60, look_d=16, look_v=99, lds_slack=16, vm_gap=64, bar_gap=100, bar_cost=32, vm_rate=250, vm_lat=900)
HPRIO = "$"
LPRIO = None
TMERGE = {"T1": "Ta", "Ty": "Tb"}
TPRIO = "lo en0 T1 l1 fY0 Ta ae ra Te Ty pYB1 qYB0 fY2 ad pYB0 fY1 qYB2 lb pYB2 qYE0 qYB1 fYB2 fYE1 pYE0 Tz fYB0 fYE0 en1 re fYB1 pYE1 Tb le rb oa qYE1 ob Tc ao Tw oe"


def f32(x):
    return "0x%08x" % struct.unpack("<I", struct.pack("<f", x))[0]


def lane_ids(P):
    ln, c, g = P.v("LANE", 1), P.v("C", 1), P.v("G", 1)
    P.many(f"""
    v_mbcnt_lo_u32_b32 {ln}, -1, 0
    v_mbcnt_hi_u32_b32 {ln}, -1, {ln}
    v_and_b32 {c}, 15, {ln}
    v_lshrrev_b32 {g}, 4, {ln}""")
    return ln, c, g


def head_program(L, body, safe, opt):
    P = Prog()
    P.pre = "h"
    P.vs.update(L.vs)
    T = P.t
    LZ = dict(look=999, lazy=True)
    P("s_load_dwordx16 s[4:19], s[0:1], 0", lat=opt.get("klat", 120))
    P("s_load_dwordx4 s[20:23], s[0:1], 64", lat=opt.get("klat", 120))
    P("s_load_dwordx2 s[38:39], s[0:1], 80", lat=opt.get("klat", 120))
    LANE, C, G = P.v("LANE", 1), P.v("C", 1), P.v("G", 1)
    l128 = T()
    sm = dict(w=0.2, gap=4)
    P.many(f"""
    v_mbcnt_lo_u32_b32 {LANE}, -1, 0
    v_mbcnt_hi_u32_b32 {LANE}, -1, {LANE}
    s_lshr_b32 s88, s2, 3
    s_lshl2_add_u32 s88, s88, s{S_H}
    v_lshlrev_b32 {l128}, 7, {LANE}""")
    if not safe:
        a = T()
        P.many(f"""
        s_getpc_b64 s[80:81]
        s_lshl_b32 s84, s88, 8
        v_and_b32 {a}, 128, {l128}
        v_add_u32 {a}, s84, {a}
        v_min_u32 {a}, L_slow-{KNAME}-256, {a}""")
        P(f"global_load_dword a255, {a}, s[80:81]", **sm)
    pa, pb = T(), T()
    P.many(f"""
    s_mul_i32 s89, s88, 576
    s_mul_i32 s88, s88, 1728
    v_min_u32 {pa}, {13 * 128}, {l128}
    v_min_u32 {pb}, {4 * 128}, {l128}
    s_mov_b32 s{S_W + 2}, 221184
    s_mov_b32 s{S_W + 3}, 0x20000
    s_mov_b32 s{S_WOD + 2}, 73728
    s_mov_b32 s{S_WOD + 3}, 0x20000""")
    c4, c3 = T(), T()
    arc, aw1, aw2 = T(), T(), T()
    P.many(f"""
    v_and_b32 {C}, 15, {LANE}
    v_lshrrev_b32 {G}, 4, {LANE}
    v_lshrrev_b32 {c4}, 2, {C}
    v_and_b32 {c3}, 3, {C}
    s_mul_i32 s87, s{S_H}, 192
    v_mad_u32_u24 {arc}, {C}, 12, s87
    v_lshlrev_b32 {aw1}, 1, {C}
    v_lshlrev_b32 {aw2}, 1, {c4}
    v_lshl_add_u32 {aw2}, {G}, 5, {aw2}
    s_movk_i32 s86, 384
    s_mov_b32 s{S_X + 2}, {NBYTES}
    s_mov_b32 s{S_X + 3}, 0x20000
    s_mov_b32 s{S_OUT + 2}, 0
    s_mov_b32 s{S_OUT + 3}, 0x20000""")
    P(";! s[4:23], s[38:39] | s[4:23], s[38:39]\n    s_waitcnt lgkmcnt(0)", name="kw", as_salu=True, cost=1)
    P.many(f"""
    s_mov_b32 s{S_W}, s6
    s_mov_b32 s{S_W + 1}, s7
    s_mov_b32 s{S_WOD}, s8
    s_mov_b32 s{S_WOD + 1}, s9""")
    P(f"buffer_load_dword a254, {pa}, s[{S_W}:{S_W + 3}], s88 offen", w=1.5, gap=4)
    P(f"buffer_load_dword a253, {pb}, s[{S_WOD}:{S_WOD + 3}], s89 offen", w=0.5, gap=4)
    P("s_load_dwordx2 s[82:83], s[10:11], 0", lat=800)
    P("s_movk_i32 s18, 676")
    P("s_mov_b32 s19, 0x20000")
    P.many(f"""
    s_mov_b32 s{S_X}, s4
    s_mov_b32 s{S_X + 1}, s5""")
    B1, A1, A2 = T(4), T(4), T(2)
    hi16 = [T() for _ in range(2)]
    P(f"buffer_load_dwordx3 {B1}[0:2], {arc}, s[16:19], 0 offen", w=0.2, gap=24)
    P(f"global_load_ushort {A1}[0], {aw1}, s[12:13]", w=0.2, gap=24)
    P(f"global_load_ushort {A1}[1], {aw1}, s[12:13] offset:32", w=0.2, gap=24)
    for k in range(2):
        P(f"global_load_ushort {A2}[{k}], {aw2}, s[14:15] offset:{16 * k}", w=0.2, gap=24)
        P(f"global_load_ushort {hi16[k]}, {aw2}, s[14:15] offset:{16 * k + 8}", w=0.2, gap=24)
    P.many(f"""
    s_mul_i32 s96, s{S_H}, 288
    s_and_b32 s97, s{S_H}, 1
    s_lshl_b32 s97, s97, 2
    s_mov_b32 s98, {PITCH - 2688}
    s_mov_b32 s99, {3 * PITCH + 3 * 384}""")
    tok, row, gsw = [], [], []
    g0 = T()
    P(f"v_add_u32 {g0}, s96, {LANE}")
    for j in range(5):
        i, t, r, k = (T() if j else g0), T(), T(), T()
        if j:
            P(f"v_add_u32 {i}, {64 * j}, {g0}")
        P.many(f"""
        v_mul_u32_u24 {t}, 2731, {i}
        v_mul_u32_u24 {r}, 6242, {i}
        v_lshrrev_b32 {t}, 16, {t}
        v_lshrrev_b32 {r}, 20, {r}
        v_and_or_b32 {k}, {t}, 3, s97
        v_xor_b32 {k}, {i}, {k}
        v_lshl_add_u32 %g{j}, {k}, 4, s99
        v_mad_u32_u24 %g{j}, {r}, s98, %g{j}""")
        tok.append(t)
        row.append(r)
        gsw.append(k)
    P.many(f"""
    s_lshr_b32 s94, s2, 3
    s_mul_i32 s{S_MP}, s94, 168
    s_mul_i32 s{S_M0}, s2, 20
    s_lshl3_add_u32 s{S_M0}, s94, s{S_M0}
    s_add_u32 s{S_MP}, s{S_MP}, 140
    s_movk_i32 s{S_STA}, {7 * 384}
    s_movk_i32 s{S_NS}, 20
    s_movk_i32 s{S_NP}, 28
    s_mov_b32 s93, {9 * PITCH + 9 * 384}
    s_mul_i32 s{S_WOFF}, s{S_H}, 5120""")
    tag = "S" if safe else "F"
    gl = ", ".join(f"%g{j}" for j in range(5))
    sl = f"s{S_M0}, s{S_MP}, s{S_NS}, s{S_NP}, s{S_STA}, s93"
    x = T(2)
    blk = f"""L_bnd{tag}:
    s_movk_i32 s{S_NP}, 24
    s_sub_u32 s{S_MP}, s{S_MP}, 20
    s_cmp_lt_u32 s2, 247
    s_cbranch_scc1 L_bndr{tag}
    s_movk_i32 s{S_NP}, 20
    s_movk_i32 s{S_NS}, 18
    s_movk_i32 s{S_MP}, -20
    s_mov_b32 s{S_MASKW}, 0
    s_cmp_lt_u32 s2, 251
    s_cbranch_scc1 L_bndc{tag}
    s_sub_u32 s94, s2, 251
    s_mul_i32 s{S_M0}, s94, 18
    s_mov_b32 s{S_MASKW}, {72 * 73 * 4802}
    s_sub_u32 s93, s93, {7 * PITCH}
"""
    for j in range(5):
        blk += f"""    v_cmp_le_u32 vcc, 4, {row[j]}
    v_add_u32 {x}[0], {504 * PITCH}, %g{j}
    v_subrev_u32 {x}[1], {7 * PITCH}, %g{j}
    v_cndmask_b32 %g{j}, {x}[0], {x}[1], vcc
"""
    blk += f"""    s_cmp_lt_u32 s2, 255
    s_cbranch_scc1 L_bndr{tag}
L_bndc{tag}:
    s_sub_u32 s94, s2, 247
    s_mul_i32 s{S_M0}, s94, 18
    s_mov_b32 s{S_STA}, {7 * PITCH}
    s_add_u32 s{S_MASKW}, s{S_MASKW}, {72 * 4802}
    s_sub_u32 s93, s93, {7 * 384}
"""
    for j in range(5):
        blk += f"""    v_mad_i32_i24 {x}[0], {row[j]}, -7, {tok[j]}
    v_cmp_le_u32 vcc, 4, {x}[0]
    v_add_u32 {x}[0], {504 * 384}, %g{j}
    v_subrev_u32 {x}[1], {7 * 384}, %g{j}
    v_cndmask_b32 %g{j}, {x}[0], {x}[1], vcc
"""
    blk += f"""    s_cmp_eq_u32 s2, 255
    s_cselect_b32 s{S_STA}, 0, s{S_STA}
    s_cselect_b32 s{S_M0}, 0, s{S_M0}
    s_cselect_b32 s{S_NS}, 2, s{S_NS}
    s_branch L_bndr{tag}
"""
    P(f";! {gl}, {sl}, {x}, s94, s{S_MASKW}, scc, vcc | {gl}, {sl}, {', '.join(tok + row)}\n"
      f"    s_cmp_ge_u32 s2, 240\n    s_cbranch_scc1 L_bnd{tag}\nL_bndr{tag}:\n;!OUT\n{blk}", name="bnd", as_salu=True)
    P.many(f"""
    s_mov_b32 s{S_STB}, {7 * PITCH - 72 * 7 * 384}
    s_mul_i32 s94, s{S_M0}, 58255
    s_lshr_b32 s94, s94, 22
    s_mul_i32 s94, s94, s{S_STB}
    s_mul_i32 s{S_SO0}, s{S_M0}, s{S_STA}
    s_add_u32 s{S_SO0}, s{S_SO0}, s94""")
    oob = T()
    P(f"v_lshl_or_b32 {oob}, {LANE}, 4, 2.0")
    x0, xdma = [], []
    xl = dict(w=opt.get("xw", 0.6), land=opt.get("xland", 2000), **LZ)
    for j in range(5):
        if j == 4:
            P.many(f"""
            v_cmp_gt_u32 vcc, 32, {LANE}
            v_cndmask_b32 %g4, {oob}, %g4, vcc""")
        P(f"s_add_u32 m0, s{S_WOFF}, {1024 * j}", **LZ)
        x0.append(P(f"buffer_load_dwordx4 %g{j}, s[{S_X}:{S_X + 3}], s{S_SO0} offen nt lds", pub=["x0"], **xl))
    P.many(f"""
    s_sub_u32 s94, s{S_NP}, 1
    s_max_u32 s94, s94, 20
    s_mul_i32 s95, s{S_H}, -44
    s_movk_i32 s99, -24""")
    EO = P.v("EO", 4)
    for j in range(3):
        w, a, m = T(), T(), T()
        e = f"{EO}[{j}]"
        P.many(f"""
        v_and_b32 {a}, -4, {tok[j]}
        v_mad_u32_u24 {w}, {a}, 3, {tok[j]}
        v_add_u32 {w}, s95, {w}
        v_mad_i32_i24 {e}, {tok[j]}, s99, {gsw[j]}
        v_med3_u32 {a}, {w}, 20, s94
        v_add_u32 {a}, s{S_MP}, {a}
        v_add_u32 {m}, s{S_M0}, {w}
        v_cmp_gt_u32 vcc, s{S_NS}, {w}
        v_cndmask_b32 {m}, {a}, {m}, vcc
        v_lshl_add_u32 {e}, {e}, 4, s93
        v_mul_u32_u24 {a}, 58255, {m}
        v_mad_u32_u24 {e}, {m}, s{S_STA}, {e}
        v_lshrrev_b32 {a}, 22, {a}
        v_mad_u32_u24 {e}, {a}, s{S_STB}, {e}""")
        P(f"s_add_u32 m0, s{S_WOFF}, {2 * RING + 1024 * j}", **LZ)
        xdma.append(P(f"buffer_load_dwordx4 {e}, s[{S_X}:{S_X + 3}], 0 offen nt lds", pub=["xe"], **xl))
        P(f"v_mov_b32 {EO}[3], {w}" if j == 0 else f"v_lshl_or_b32 {EO}[3], {w}, {8 * j}, {EO}[3]")
    vo, vrow = {384: [], 1152: []}, []
    P.many(f"""
    s_mul_i32 s85, s{S_H}, 96
    s_sub_u32 s100, s85, 1024
    s_sub_u32 s87, s85, 2048
    s_movk_i32 s91, 1152""")
    for j in range(3):
        i, r, u, b = (T() if j else LANE), T(), T(), T()
        if j:
            P(f"v_add_u32 {i}, {64 * j}, {LANE}")
        P.many(f"""
        v_mul_u32_u24 {r}, 10923, {i}
        v_lshrrev_b32 {b}, 17, {r}
        v_lshrrev_b32 {r}, 16, {r}
        v_mad_i32_i24 {u}, {r}, -6, {i}
        v_bitop3_b32 {b}, {b}, {r}, 4 bitop3:0x28
        v_lshl_add_u32 {u}, {u}, 4, s{(85, 100, 87)[j]}
        v_mul_u32_u24 {b}, 3, {b}
        v_xor_b32 {r}, {r}, {b}
        v_mad_u32_u24 {b}, {r}, s91, {u}""")
        vrow.append((r, u))
        vo[1152].append(b)
    P.many(f"""
    s_mul_i32 s90, s{S_H}, 3072
    s_add_u32 s90, s90, {L_STG}""")
    for j in range(3):
        vo[384].append(T())
        P(f"v_mad_u32_u24 {vo[384][j]}, {vrow[j][0]}, s86, {vrow[j][1]}")
    rd, dw = {}, {}

    def stage(u):
        srd, ld, so = (S_WOD, 384, 32 * (u - 18) * 384) if u >= 18 else (S_W, 1152, 32 * (u % 6) * 1152 + 384 * (u // 6))
        deps = [(n, 0) for n in rd.get(u - 6, [])]
        P(f"s_add_u32 m0, s90, {slot(u)}", deps=deps, **LZ)
        P(f"s_mov_b32 s92, {so}", deps=deps, **LZ)
        dw[u] = [P(f"buffer_load_dwordx4 {vo[ld][j]}, s[{srd}:{srd + 3}], s92 offen offset:{1024 * j} lds", name=f"dw{u}_{j}",
                   pub=[f"c{u}"], need=[f"t{u - 6}"], deps=deps, lat=opt.get("m0lat", 0) if u > 2 else 0, **LZ) for j in range(3)]

    for u in range(6):
        stage(u)
    P.act = "co"
    one = T()
    a = T()
    P(f"v_mov_b32 {a}, 0x3f803f80")
    P(f"v_cmp_eq_u32 vcc, 0, {c3}")
    for k in range(4):
        P(f"v_cndmask_b32 %ONES[{k}], 0, {a}, vcc")
    a, b = T(), T()
    P.many(f"""
    v_and_b32 {a}, 1, {LANE}
    v_lshlrev_b32 {a}, 4, {a}
    v_mov_b32 {b}, 0x3f80
    v_lshlrev_b32 {one}, {a}, {b}
    v_cmp_gt_u32 vcc, 2, {c3}
    v_cndmask_b32 %SEL[0], 0, {one}, vcc
    v_cndmask_b32 %SEL[2], 0, {one}, vcc
    v_cmp_le_u32 vcc, 2, {c3}
    v_cndmask_b32 %SEL[1], 0, {one}, vcc
    v_cndmask_b32 %SEL[3], 0, {one}, vcc""")
    MS = T(2)
    P.many(f"""
    v_cmp_eq_u32 vcc, {G}, {c4}
    v_cndmask_b32 {MS}[0], 0, %SEL[0], vcc
    v_cndmask_b32 {MS}[1], 0, %SEL[1], vcc""")
    if not safe:
        four = T()
        P(f"v_mov_b32 {four}, 0x44004400")
        for k in range(4):
            P(f"v_cmp_eq_u32 vcc, {k}, {c3}")
            P(f"v_cndmask_b32 %SELH[{k}], 0, {four}, vcc")
    if not safe:
        P.act = "ze"
    for n, k in ZERO_ELEMS:
        P(f"v_mov_b32 %{n}[{k}], 0", look=4)
    P.act = "tr"
    tr = [T(), T()]
    a, b = T(), T()
    P.many(f"""
    v_lshrrev_b32 {b}, 1, {G}
    v_lshl_add_u32 {a}, {G}, 2, {c4}
    v_lshl_add_u32 {a}, {b}, 3, {a}
    v_mul_u32_u24 {a}, 96, {a}
    v_add_u32 {a}, s90, {a}
    v_lshl_add_u32 {tr[0]}, {c3}, 4, {a}
    v_lshl_add_u32 {tr[1]}, {c3}, 3, {a}""")
    tq0, tk0, ae = T(), T(), T()
    aq, ak = [T() for _ in range(3)], [T() for _ in range(12)]

    def bias_addr():
        P.many(f"""
        s_add_u32 s101, s{S_WOFF}, {L_TAB}""")

        def a4(t4):
            i = T()
            P.many(f"""
            v_mul_u32_u24 {i}, 37, {t4}
            v_lshrrev_b32 {i}, 10, {i}
            v_mad_u32_u24 {t4}, {i}, 24, {t4}""")

        P.many(f"""
        v_mul_u32_u24 {tq0}, 48, {c4}
        v_lshl_add_u32 {tq0}, {c3}, 2, {tq0}
        v_mul_u32_u24 {tk0}, 48, {G}""")
        for q in range(3):
            P(f"v_add_u32 {aq[q]}, {16 * q}, {tq0}")
            a4(aq[q])
            P(f"v_add_u32 {aq[q]}, s101, {aq[q]}")
        for k in range(12):
            P(f"v_add_u32 {ak[k]}, {4 * k}, {tk0}")
            a4(ak[k])
        P(f"v_lshl_add_u32 {ae}, {G}, 4, {tq0}")
        a4(ae)
        a = T()
        P.many(f"""
        v_mov_b32 {a}, {4 * 84}
        v_cmp_gt_u32 vcc, 3, {G}
        v_cndmask_b32 {ae}, {a}, {ae}, vcc
        v_sub_u32 {ae}, s101, {ae}""")

    P.act = "cp"
    chk = "" if safe else f"""
    s_sext_i32_i16 s84, s82
    s_ashr_i32 s85, s82, 16
    s_max_i32 s84, s84, s85
    s_sext_i32_i16 s85, s83
    s_max_i32 s84, s84, s85
    s_ashr_i32 s85, s83, 16
    s_max_i32 s84, s84, s85
    s_cmp_gt_i32 s84, {-99999 if opt.get('force_slow') else LS_FAST}
    s_cbranch_scc1 L_slow"""
    P(";! s[82:85], scc | s[82:85]\n    s_waitcnt lgkmcnt(0)" + chk, name="lsw", as_salu=True, cost=1)
    P(f"s_mov_b32 s{S_OUT}, s22")
    P(f"s_mov_b32 s{S_OUT + 1}, s23")
    a = T()
    P.many(f"""
    s_lshl_b32 s84, s{S_H}, 4
    s_lshr_b64 s[82:83], s[82:83], s84
    s_lshl_b32 s82, s82, 16
    v_mov_b32 {a}, s82
    v_min_f32 {a}, {f32(4.59375)}, {a}
    v_max_f32 {a}, {f32(-100.0)}, {a}
    v_mul_f32 {a}, {f32(LOG2E)}, {a}
    v_exp_f32 {a}, {a}
    v_cvt_pk_bf16_f32 {a}, {a}, {a}
    v_lshlrev_b32 {a}, 16, {a}
    v_mul_f32 {a}, {f32(2 * LOG2E)}, {a}
    v_readfirstlane_b32 s{S_TAU2}, {a}
    v_add_f32 {a}, {a}, {a}
    v_readfirstlane_b32 s{S_TAU4}, {a}
    s_mov_b32 s{S_EPSQ}, {f32(0.25e-12)}
    s_mov_b32 s{S_EPSL}, {f32(192 * 1e-5 / 16)}
    s_mov_b32 s{S_SQ}, {f32(192 ** 0.5)}""")
    atab, m8 = T(), T()
    P.many(f"""
    v_lshl_or_b32 {A1}[0], {A1}[1], 16, {A1}[0]
    v_lshl_or_b32 {A2}[0], {hi16[0]}, 16, {A2}[0]
    v_lshl_or_b32 {A2}[1], {hi16[1]}, 16, {A2}[1]
    v_cmp_gt_u32 vcc, 16, {LANE}
    v_cndmask_b32 {A1}[3], 0, {A1}[0], vcc
    v_cndmask_b32 {A1}[0], 0, {A1}[0], vcc
    v_mov_b32 {A1}[1], 0
    v_mov_b32 {A1}[2], 0
    v_mov_b32 {B1}[3], 0
    v_mul_u32_u24 {atab}, 5120, {G}
    v_add_u32 {atab}, {arc}, {atab}
    s_mov_b32 s84, {f32(16 * LOG2E)}
    v_mov_b32 {m8}, {f32(-8 * LOG2E)}""")
    pre2 = []
    D1, D2 = [T(4) for _ in range(3)], [T(4) for _ in range(3)]
    for k in range(3):
        P(f"{M16} {D1[k]}, {A1}[{2 * (k & 1)}:{2 * (k & 1) + 1}], {B1}[{k & 2}:{(k & 2) + 1}], 0")
    for k in range(3):
        for r in range(4):
            P(f"v_max_f32 {D1[k]}[{r}], 0, {D1[k]}[{r}]")
        pack(P, D1[k][1:], D1[k], 0)
        P(f"{M16} {D2[k]}, {A2}, {D1[k]}[0:1], 0")
    for k in range(3):
        z = f"{D2[k]}[0]"
        P.many(f"""
        v_cvt_pk_bf16_f32 {z}, {z}, {z}
        v_lshlrev_b32 {z}, 16, {z}
        v_mul_f32 {z}, {f32(-LOG2E)}, {z}
        v_exp_f32 {z}, {z}
        v_add_f32 {z}, 1.0, {z}
        v_rcp_f32 {z}, {z}
        v_cvt_pk_bf16_f32 {z}, {z}, {z}
        v_lshlrev_b32 {z}, 16, {z}
        v_fma_f32 {z}, {z}, s84, {m8}""")
        pre2.append(P(f"ds_write_b32 {atab}, {z} offset:{L_TAB + 4 * k}", pub=["w2"]))
    P("s_barrier", name="Bx", need=["w2"], deps=[(n, 0) for n in pre2 + ["lsw"]])
    wrd = []
    W = {}

    def wo_addr():
        a = T()
        W.update(own=[T(), T()], am=[T(), T()], amw=T(), amr=T())
        P.many(f"""
        v_and_b32 {a}, 8, {C}
        v_add_u32 {a}, {a}, {C}
        v_mul_u32_u24 {a}, 96, {a}
        v_add_u32 {a}, s90, {a}
        v_lshl_add_u32 {W['own'][0]}, {G}, 4, {a}
        v_lshl_add_u32 {W['own'][1]}, {G}, 3, {a}
        s_lshr_b32 s93, s{S_H}, 1
        s_mul_i32 s93, s93, {3 * 12288 - 2 * 3072}
        s_and_b32 s94, s{S_H}, 1
        s_mul_i32 s94, s94, {768 - 3072}
        s_add_u32 s93, s93, s94
        v_add_u32 {W['am'][0]}, s93, {W['own'][0]}
        v_add_u32 {W['am'][1]}, s93, {W['own'][1]}
        v_lshlrev_b32 {W['amr']}, 4, {G}
        v_add_u32 {W['amr']}, {L_MEAN}, {W['amr']}
        s_lshr_b32 s93, s{S_H}, 1
        s_mul_i32 s93, s93, 5120
        s_lshl_b32 s94, s97, 4
        s_add_u32 s93, s93, s94
        v_add_u32 {W['amw']}, s93, {W['amr']}
        v_cmp_eq_u32 vcc, 0, {C}
        v_cndmask_b32 {W['amw']}, {oob}, {W['amw']}, vcc""")

    def wo_means():
        P("s_barrier", name="Bw1", need=[f"c{u}" for u in range(18, 24)], deps=[(n, 0) for u in range(18, 24) for n in dw[u]] + [("Bx0", 0)])
        pre = []
        for k in range(3):
            lo, hi, d = [T(4) for _ in range(4)], [T(4) for _ in range(2)], T(4)
            for w in range(4):
                wrd.append(P(f"ds_read_b128 {lo[w]}, {W['am'][0]} offset:{12288 * k + 3072 * w}", deps=[("Bw1", 0)], pub=["wr"]))
                wrd.append(P(f"ds_read_b64 {hi[w >> 1]}[{2 * (w & 1)}:{2 * (w & 1) + 1}], {W['am'][1]} offset:{12288 * k + 3072 * w + 64}", deps=[("Bw1", 0)], pub=["wr"]))
            for n, x in enumerate(lo + hi):
                P(f"{M32} {d}, {x}, %ONES, {'0' if n == 0 else d}", chain=f"mean{k}")
            for r in range(4):
                P(f"v_mul_f32 {d}[{r}], {f32(-1.0 / 192)}, {d}[{r}]")
            pre.append(P(f"ds_write_b128 {W['amw']}, {d} offset:{128 * k}", pub=["wm"]))
        P("s_barrier", name="Bw2", need=["wm"], deps=[(n, 0) for n in pre])

    def center(s):
        for a in range(2):
            x, mu = T(6), T(4)
            wrd.append(P(f"ds_read_b128 {x}[0:3], {W['own'][0]} offset:{slot(s) + 768 * a}", deps=[("Bw1", 0)], pub=["wr"], look=9))
            wrd.append(P(f"ds_read_b64 {x}[4:5], {W['own'][1]} offset:{slot(s) + 768 * a + 64}", deps=[("Bw1", 0)], pub=["wr"], look=9))
            P(f"ds_read_b128 {mu}, {W['amr']} offset:{5120 * (s // 3) + 128 * (s % 3) + 64 * a}", deps=[("Bw2", 0)], look=9)
            ds = [T(4) for _ in range(3)]
            for j in range(3):
                P(f"{M16} {ds[j]}, {x}[{2 * j}:{2 * j + 1}], {MS}, {mu}", look=opt.get('clook', 8))
            for j in range(3):
                k = 6 * j + s
                for p in range(2):
                    src = f"{ds[j]}[{2 * p}], {ds[j]}[{2 * p + 1}]"
                    if k < 10:
                        P(f"v_cvt_pk_bf16_f32 {ds[j]}[{2 * p}], {src}")
                        P(f"v_accvgpr_write_b32 a{216 + 4 * k + 2 * a + p}, {ds[j]}[{2 * p}]")
                    else:
                        P(f"v_cvt_pk_bf16_f32 v{224 + 4 * (k - 10) + 2 * a + p}, {src}")

    def tr_unit(u):
        part, s = divmod(u, 6)
        rd[u] = []
        for j in range(3):
            b = 72 * part + wq(j, s)
            perm = part == 2 and j < 2
            for a in range(2):
                o = slot(u) + 768 * a + (8 * j if perm else 32 * j)
                rd[u].append(P(f"ds_read_b64_tr_b16 a[{b + 2 * a}:{b + 2 * a + 1}], {tr[0 if perm else 1]} offset:{o}",
                               need=[f"c{u}"], pub=[f"t{u}"], deps=[(n, 0) for n in dw[u]], cost=16 if perm else 8, **LZ))

    def gathers(q):
        gk = dict(deps=[("Bx", 0)], cost=opt.get("gcost", 24), look=999)
        for k in range(12):
            r = f"%B{q}{k // 4}[{k % 4}]"
            P(f"v_sub_u32 {r}, {aq[q]}, {ak[k]}", look=999)
            P(f"ds_read_b32 {r}, {r} offset:{4 * 84}", **gk)
        P(f"ds_read_b32 %BT[{q}], {aq[q]}", **gk)
        if q == 0:
            P(f"ds_read_b32 %BT[3], {ae} offset:{4 * 168}", **gk)

    def mask_fix():
        ball = ", ".join(f"%B{q}{k}" for q in range(3) for k in range(3)) + ", %BT"
        mm, x = [T() for _ in range(13)], T(2)
        m = ", ".join(mm)
        txt = f";! {ball}, {m}, {x}, s[20:23], s85, scc, vcc | {ball}, {tq0}, {G}, s[20:23], s{S_MASKW}\n"
        txt += f"""    s_cmp_ge_u32 s2, 247
    s_cbranch_scc1 L_mask{tag}
L_nomask{tag}:
;!OUT
L_mask{tag}:
    s_add_u32 s20, s20, s{S_MASKW}
    s_addc_u32 s21, s21, 0
    s_mov_b32 s22, 4802
    s_mov_b32 s23, 0x20000
    s_mov_b32 s85, {f32(LOG2E)}
    s_waitcnt vmcnt(0)
"""
        for q in range(3):
            txt += f"""    v_lshrrev_b32 {x}[0], 2, {tq0}
    v_add_u32 {x}[0], {4 * q}, {x}[0]
    v_mul_u32_u24 {x}[0], 98, {x}[0]
    v_mad_u32_u24 {x}[1], {G}, 24, {x}[0]
"""
            txt += "".join(f"    buffer_load_ushort {mm[k]}, {x}[1], s[20:23], 0 offen offset:{2 * k}\n" for k in range(12))
            txt += f"    buffer_load_ushort {mm[12]}, {x}[0], s[20:23], 0 offen offset:96\n    s_waitcnt vmcnt(0)\n"
            for k in range(13):
                dst = f"%B{q}{k // 4}[{k % 4}]" if k < 12 else f"%BT[{q}]"
                txt += f"    v_lshlrev_b32 {mm[k]}, 16, {mm[k]}\n    v_fmac_f32 {dst}, s85, {mm[k]}\n"
        txt += f"""    v_lshrrev_b32 {x}[0], 2, {tq0}
    v_lshl_add_u32 {x}[0], {G}, 2, {x}[0]
    v_cmp_gt_u32 vcc, 3, {G}
    v_mov_b32 {x}[1], 48
    s_nop 1
    v_cndmask_b32 {x}[0], {x}[1], {x}[0], vcc
    v_add_u32 {x}[0], {48 * 49}, {x}[0]
    v_lshlrev_b32 {x}[0], 1, {x}[0]
    buffer_load_ushort {mm[0]}, {x}[0], s[20:23], 0 offen
    s_waitcnt vmcnt(0)
    v_lshlrev_b32 {mm[0]}, 16, {mm[0]}
    v_fmac_f32 %BT[3], s85, {mm[0]}
    s_branch L_nomask{tag}"""
        P(txt, name="mask")
        a = T()
        P.many(f"""
        v_readlane_b32 s84, %BT[3], 48
        v_mov_b32 {a}, {f32(-1e30)}
        v_cmp_gt_u32 vcc, 16, {LANE}
        v_cndmask_b32 %BT[0], {a}, %BT[0], vcc
        v_cndmask_b32 %BT[1], {a}, %BT[1], vcc
        v_cndmask_b32 %BT[2], {a}, %BT[2], vcc
        v_cmp_gt_u32 vcc, 49, {LANE}
        v_cndmask_b32 %BT[3], {a}, %BT[3], vcc""")

    def addresses():
        a, b, c7, l16 = T(), T(), T(), T()
        P.v("hF0", 1)
        P.v("hF1", 1)
        P.v("aRec", 1)
        P.many(f"""
        v_mul_u32_u24 {a}, 5120, {c4}
        v_mad_u32_u24 {a}, {c3}, s86, {a}
        v_and_b32 {c7}, 7, {C}
        v_xor_b32 {b}, {c7}, {G}
        v_lshl_add_u32 %hF0, {b}, 4, {a}
        v_xor_b32 %hF1, 64, %hF0
        v_add_u32 %aF0, {2 * RING}, %hF0
        v_xor_b32 %aF1, 64, %aF0
        s_mul_i32 s93, s{S_H}, 6
        v_add_u32 {a}, {3 * RING}, {a}
        v_add_u32 {b}, s93, {G}
        v_xor_b32 {b}, {c7}, {b}
        v_lshl_add_u32 %aW1, {b}, 4, {a}
        v_lshrrev_b32 {b}, 1, {G}
        v_add3_u32 {b}, {b}, s93, 4
        v_xor_b32 {b}, {c7}, {b}
        v_lshl_add_u32 {b}, {b}, 4, {a}
        v_and_b32 {a}, 1, {G}
        v_lshl_add_u32 %aW2, {a}, 3, {b}
        v_lshlrev_b32 {l16}, 4, {LANE}
        s_add_u32 s93, s{S_WOFF}, {RING}
        v_add_u32 %aL, s93, {l16}
        v_add_u32 %aNr, {L_LN}, {l16}
        s_lshr_b32 s93, s{S_H}, 1
        s_lshl_b32 s93, s93, 10
        s_lshl_b32 s94, s97, 1
        s_add_u32 s93, s93, s94
        v_add_u32 %aNw, s93, %aNr
        s_mul_i32 s93, s{S_H}, {E_HEAD}
        s_add_u32 s93, s93, {L_E}
        v_mul_u32_u24 {a}, 80, {G}
        v_add_u32 {b}, s93, {a}
        v_mul_u32_u24 {a}, {E_REC}, {C}
        v_add_u32 %aRec, {a}, {b}
        v_subrev_u32 %aRec, {4 * E_HEAD}, %aRec
        v_cmp_eq_u32 vcc, 0, {c4}
        v_cndmask_b32 %aE1, {oob}, {b}, vcc
        v_cmp_eq_u32 vcc, 3, {c3}
        v_cndmask_b32 %aE1, %aE1, {b}, vcc
        v_mul_u32_u24 {a}, 80, {c4}
        v_lshl_add_u32 {a}, {G}, 3, {a}
        v_lshl_add_u32 {a}, {c3}, 1, {a}
        v_add_u32 {a}, s93, {a}
        v_cmp_gt_u32 vcc, 3, {G}
        v_cndmask_b32 %aE2, {oob}, {a}, vcc
        v_mov_b32 %GD, {a if safe else 0}
        s_mov_b32 s{S_B}, {3 * RING}
        s_mov_b32 s{S_B + 1}, {2 * RING}
        s_mov_b32 s{S_B + 2}, {RING}
        s_mov_b32 s{S_B + 3}, 0
        s_mov_b32 s{S_SO + 1}, s{S_SO0}
        s_mov_b32 s{S_SO + 2}, 0
        s_mov_b32 s{S_SO + 3}, 0
        s_mov_b32 s{S_SO + 4}, 0
        s_mov_b32 s{S_IT}, -1
        s_mov_b32 s{S_K}, 1
        s_add_u32 s93, s{S_M0}, 1
        s_mul_i32 s94, s93, 58255
        s_lshr_b32 s94, s94, 22
        s_mul_i32 s94, s94, s{S_STB}
        s_mul_i32 s{S_SO}, s93, s{S_STA}
        s_add_u32 s{S_SO}, s{S_SO}, s94
        s_movk_i32 s{S_R}, {E_REC}
        s_mov_b32 s{S_R + 1}, 0
        s_mov_b32 s{S_R + 2}, 0
        s_mov_b32 s{S_TK}, 0
        s_mov_b32 s{S_MSK}, 3
        v_mov_b32 %TK, 0
        s_sub_u32 s93, s{S_NS}, 1
        s_cmp_eq_u32 s{S_H}, 0
        s_cselect_b32 s{S_AEN}, s93, -1
        s_cmp_gt_u32 s{S_NP}, 20
        s_cselect_b32 s{S_AEN}, s{S_AEN}, -1
        s_and_b32 s93, s2, -8
        s_sub_u32 s93, {L_LN}, s93
        s_sub_u32 s{S_DBG}, s38, s93
        s_subb_u32 s{S_DBG + 1}, s39, 0
        s_mov_b32 s{S_DBG + 2}, {L_LN + 4}
        s_mov_b32 s{S_DBG + 3}, 0x20000
        s_mov_b32 s{S_TINY}, 0x00010001""")

    exr, ewr, evw = [], [], []

    rec = {t: [T(4) for _ in range(5)] for t in range(2)}

    def e_dst(P, nm, t, j):
        return rec[t][2 * (nm == "K") + (j == 2)], 2 * (j & 1)

    def e_qk(nm, t):
        exr.extend(frag_reads(P, f"EX{nm}", t, "%hF", 2 * RING, deps=[("Bx0", 0)], pub=["b2"]))
        for j in range(3):
            if safe:
                chain(P, f"E{nm}{t}{j}", WQ if nm == "Q" else WK, j, f"EX{nm}", t)
                sumsq(P, f"ss{nm}e{t}", f"E{nm}{t}{j}", j == 0, S_EPSQ)
            else:
                h_chain(P, nm, t, j, f"EX{nm}", P.v("EB", 4), None, e_dst, "E")

    def e_norm(t):
        d, tmp = f"{rec[t][1]}[2]", T()
        if safe:
            norm_reduce(P, f"e{t}", "%P2")
            for nm in "QK":
                for j in range(3):
                    scale_pack(P, f"E{nm}{t}{j}", f"%NRe{t}[{int(nm == 'K')}]", *e_dst(P, nm, t, j), "f16")
            P(f"v_mov_b32 {d}, 0x3f80")
        else:
            if t == 0:
                h_reduce(P, (0, 1), "%EB", "ER")
            h_scale(P, t, "Q", e_dst, "ER")
            h_scale(P, t, "K", e_dst, "ER")
            for n in range(12):
                (q, o), (k, _) = e_dst(P, "Q", t, n // 4), e_dst(P, "K", t, n // 4)
                r, h = o + (n >> 1 & 1), n & 1
                P(f"v_fma_mix_f32 {d}, {q}[{r}], {k}[{r}], {d if n else 0} op_sel:[{h},{h},0] op_sel_hi:[1,1,0]")
            xgroup_max(P, d, tmp, "v_add_f32")
            P.many(f"""
            v_add_f32 {d}, s84, {d}
            v_exp_f32 {d}, {d}
            v_cvt_pk_bf16_f32 {d}, {d}, 0
            v_cmp_gt_u32 vcc, 16, {LANE}
            v_cndmask_b32 {d}, 0, {d}, vcc""")
        P(f"v_mov_b32 {rec[t][1]}[3], 0")
        if t == 0:
            rec_write(0, "qk")

    def rec_write(t, part):
        base = 4 * E_HEAD * (1 - t)
        dp = [("Bend", 0)] if t else []
        if part != "v":
            pad = P(f"ds_write_b128 %aRec, %SEL offset:{base + 80}", look=999, deps=dp)
            for i in range(3):
                ewr.append(P(f"ds_write_b128 %aRec, {rec[t][i]} offset:{base + 16 * i}", deps=[(pad, 0)]))
        if part == "qk":
            ewr.append(P(f"ds_write_b64 %aRec, {rec[t][3]}[0:1] offset:{base + E_KH}"))
        if part == "v":
            evw.append(P(f"ds_write_b64 %aRec, {rec[t][3]}[2:3] offset:{base + E_V}"))
        if part == "all":
            P(f"ds_write_b128 %aRec, {rec[t][3]} offset:{base + E_KH}", deps=dp)
        if part != "qk":
            evw.append(P(f"ds_write_b128 %aRec, {rec[t][4]} offset:{base + E_V + 8}", deps=dp))

    def e_v(t):
        q, qh, k, kh, v = rec[t]
        exr.extend(frag_reads(P, "EXV", t, "%hF", 2 * RING, deps=[("Bx0", 0)], pub=["b2"]))
        for j in range(3):
            chain(P, f"EV{t}{j}", WV, j, "EXV", t)
            pack(P, f"EV{t}{j}", *((kh, 2) if j == 0 else (v, 2 * j - 2)))
        if t == 0:
            rec_write(0, "v")

    def g_part(nm, t):
        exr.extend(frag_reads(P, f"HX{nm}", t, "%hF", deps=[("Bx0", 0)], pub=["b2"]))
        nb = P.v(f"HB{t & 2}", 4)
        for j in range(3):
            if nm == "V":
                chain(P, f"AV{t}{j}", WV, j, "HXV", t, swap=True)
                pack(P, f"AV{t}{j}", *v_dst(t, j))
            else:
                h_chain(P, nm, t, j, f"HX{nm}", nb)

    KT = [("E", 0), ("E", 1), ("A", 0), ("A", 1), ("A", 2)]

    def k_step(nm, s):
        for k, (pre, t) in enumerate(KT):
            if nm == "K" and s == 0:
                post("Q", k)
            x = T(4)
            off = (2 * RING if pre == "E" else 0) + 1536 * t + 128 * (s >> 1)
            exr.append(P(f"ds_read_b128 {x}, %hF{s & 1} offset:{off}", deps=[("Bx0", 0)], pub=["b2"]))
            for j in range(3):
                a = P.v(f"{pre}{nm}{t}{j}", 4)
                kw = dict(look=opt.get("klook", 3)) if nm == "K" and s == 0 else {}
                P(f"{M32} {a}, {(WQ if nm == 'Q' else WK)(j, s)}, {x}, {a if s else 0}", name=f"m{pre}{nm}{t}{j}{s}", **kw)

    def post(nm, k):
        pre, t = KT[k]
        for j in range(3):
            if pre == "E":
                h_chain(P, nm, t, j, None, P.v("EB", 4), None, e_dst, "E")
            else:
                h_chain(P, nm, t, j, None, P.v(f"HB{t & 2}", 4))

    def g_norm(tiles):
        if tiles == (2,):
            P("v_mov_b32 %HB2[2], 0")
            P("v_mov_b32 %HB2[3], 0")
        h_reduce(P, tiles, f"%HB{tiles[0]}")
        for t in tiles:
            h_scale(P, t, "K")
            h_scale(P, t, "Q")

    x1 = []

    def units(a, b):
        for u in range(a, b):
            tr_unit(u)
            stage(u + 6)

    def load_x1():
        for j in range(5):
            P(f"s_add_u32 m0, s{S_WOFF}, {RING + 1024 * j}", **LZ)
            x1.append(P(f"buffer_load_dwordx4 %g{j}, s[{S_X}:{S_X + 3}], s{S_SO} offen nt lds", pub=["x1"], **LZ))

    def bend():
        P("s_barrier", name="Bend", need=["x1", "wr"], deps=[(n, 0) for n in x1 + wrd])
        a = T()
        P(f"s_lshl_b32 s93, s{S_H}, 10")
        P(f"v_add_u32 {a}, s93, %aNr")
        P(f"ds_write_b128 {a}, {EO} offset:{L_EO - L_LN}", deps=[("Bend", 0)])
        rec_write(1, "all")

    shift = {o.name: s for o, s in body}
    keep = lambda o: (o.stage >= 0 and (safe or o.attr["act"] != "G")) or o.stage == -9
    items = [(o, 0) for o in L.ops if keep(o) and shift[o.name] <= 0 and o.name not in ("B1", "B3", "wB3", "wB2") and not o.attr.get("tk")]
    items += [(o, 1) for o in L.ops if shift[o.name] == -1 and o.name not in ("B3", "wB3") and (o.stage >= -1 or o.stage == -9)]
    have = {(o.name, u) for o, u in items}
    done = set()

    def adopt(pred):
        for o, u in items:
            if (o.name, u) in done or not pred(o, u):
                continue
            done.add((o.name, u))
            P.adopt(L, [(o, u)], have)
            c = P.ops[-1]
            c.attr["act"] = P.act
            if o.name.startswith("rdX"):
                c.deps.append(("Bend" if u else "Bx0", 0))
            if o.name == "B2":
                c.deps += [(n, 0) for n in exr + ["Bx0", "mask"]]
            if o.name.startswith("rdE"):
                c.deps += [(n, 0) for n in ewr[:4] + (evw[:2] if o.name.startswith("rdEV") else [])]
            if o.name.startswith("dma"):
                c.deps += [("B2@0", 0)] + [(n, 0) for n in x1]
                c.attr.update(lat=0, **LZ)

    order = opt.get("horder") or (
        "ba ad wa bx u0 u1 Q0 Q1 Q2 Q3 Q4 Q5 u2 x1 K0 K1 K2 K3 K4 ga0 ga1 ga2 mk K5 kp0 kp1 kp2 kp3 en0 gn0 kp4 gn2 st er s0 "
        "eV0 x0 eql eqs gV0 en1 s1 gV1 gV2 eV1 ev B2 pv0 wm x1s o oo0 eqp eqo s2 c0 pv1 c1 x2 c2 c3 oo1 c4 c5 pv2 oo2 be end")
    if safe:
        order = "ad ba ga0 ga1 ga2 mk bx u0 u1 eQ0 eQ1 u2 x1 eK0 eK1 en0 en1 wa eV0 eV1 wm c0 c1 c2 c3 c4 c5 be all end"
    for a in order.split():
        P.act = a
        if a == "ad": addresses()
        elif a == "be": bend()
        elif a == "ba": bias_addr()
        elif a[:2] == "ga": gathers(int(a[2]))
        elif a == "mk": mask_fix()
        elif a[0] in "QK": k_step(a[0], int(a[1]))
        elif a[:2] == "kp": post("K", int(a[2]))
        elif a[0] == "u": units(6 * int(a[1]), 6 * int(a[1]) + 6)
        elif a == "bx": P("s_barrier", name="Bx0", need=["x0", "xe"], deps=[(n, 0) for n in x0 + xdma + ["Bx"]])
        elif a == "x1": load_x1()
        elif a == "wa": wo_addr()
        elif a == "wm": wo_means()
        elif a[0] == "c": center(int(a[1]))
        elif a[:2] in ("eQ", "eK"): e_qk(a[1], int(a[2]))
        elif a[:2] == "en" and a != "end": e_norm(int(a[2]))
        elif a[:2] == "eV": e_v(int(a[2]))
        elif a[:2] == "gn": g_norm((0, 1) if a[2] == "0" else (2,))
        elif a[0] == "g": g_part(a[1], int(a[2]))
        elif a == "st": adopt(lambda o, u: u == 0 and o.attr["act"] == "G" and o.name != "B2")
        elif a == "B2": adopt(lambda o, u: o.name == "B2" and u == 0)
        elif a == "o": adopt(lambda o, u: u == 0 and o.attr["act"] in ("o0", "o1", "o2", "o3", "o4"))
        elif a == "all": adopt(lambda o, u: u == 0)
        elif a == "end":
            assert all((o.name, u) in done for o, u in items if u == 0)
            adopt(lambda o, u: True)
        else:
            adopt(lambda o, u: u == 0 and o.attr["act"] == a.replace("x1s", "x1"))
    return P


def tail_program(L, body, safe, opt):
    P = Prog()
    P.pre = "t"
    P.vs.update(L.vs)
    T = P.t
    wm = opt.get("wm", 64)
    shift = {o.name: s for o, s in body}
    assert all(shift[n] == -1 for n in L.early)
    late = [n for n in L.stateful if n not in L.early and shift[n] != 0]
    assert all(next(o for o in L.ops if o.name == n).text.startswith(f"s_sub_u32 s{S_D + 1},") for n in late), late
    i1 = next(k for k, o in enumerate(L.ops) if o.name == "wLN")
    items = [(o, 0) for o in L.ops if shift[o.name] == 1]
    items += [(o, 1) for o in L.ops[:i1 + 1] if o.stage == -2 and shift[o.name] >= 0]
    assert not [o for o in L.ops[i1 + 1:] if o.stage in (-1, -2) and shift[o.name] == -1]
    P.adopt(L, items)
    for o in P.ops:
        o.attr["act"] = "lo" if o.name.endswith("@0") else "l1"
    wr = lambda act: [o.name for o in P.ops if o.kind == "dsw" and o.attr["act"] == act]
    next(o for o in P.ops if o.name == "wLN@1").pub = ["ta"]
    wm = opt.get("twm", 128)
    P.act = "ad"
    for k, (nm, src, a, b) in enumerate((("aFo", "aF", 1, 0), ("aWy", "aW", 2, 1), ("aWe", "aW", 0, 1))):
        P(f"s_sub_u32 s{84 + k}, s{S_B + a}, s{S_B + b}")
        for i in ((0, 1) if src == "aF" else (1, 2)):
            P(f"v_add_u32 {P.v(nm + str(i), 1)}, s{84 + k}, %{src}{i}")
    for k in range(3):
        P(f"s_sub_u32 s{93 + k}, s{S_B + k}, s{S_B + 3}")
        P(f"v_add_u32 {P.v(f'aL{k}', 1)}, s{93 + k}, %aL")
    P.act = "ae"
    LANE, C, G = lane_ids(P)
    recs, b = [T(), T()], T()
    P.many(f"""
    s_mov_b32 s{S_OUT + 2}, {NBYTES}
    s_mul_i32 s89, s{S_H}, {E_HEAD}
    s_add_u32 s89, s89, {L_E}
    v_mul_u32_u24 {b}, 80, {G}
    v_add_u32 {b}, s89, {b}
    s_movk_i32 s90, {E_REC}
    s_lshr_b32 s91, s{S_MSK}, 16""")
    for t in range(2):
        a = T()
        P.many(f"""
        v_mad_u32_u24 {recs[t]}, {C}, s90, {b}
        v_lshrrev_b32 {a}, {C}, s{91 if t else S_MSK}
        v_and_b32 {a}, 1, {a}""")
        if t:
            P(f"v_subrev_u32 {recs[t]}, {4 * E_HEAD}, {recs[t]}")
        P(f"v_cmp_eq_u32 vcc, 1, {a}")
        P(f"v_cndmask_b32 {recs[t]}, {b}, {recs[t]}, vcc")
    P.act = "ao"
    EO, a = T(4), T()
    P.many(f"""
    s_lshl_b32 s92, s{S_H}, 10
    v_add_u32 {a}, s92, %aNr
    ds_read_b128 {EO}, {a} offset:{L_EO - L_LN}""")
    for j in range(3):
        a = T()
        P.many(f"""
        v_lshrrev_b32 {a}, {8 * j}, {EO}[3]
        v_lshrrev_b32 {a}, {a}, s{S_MSK}
        v_and_b32 {a}, 1, {a}
        v_cmp_eq_u32 vcc, 1, {a}
        v_cndmask_b32 {EO}[{j}], 2.0, {EO}[{j}], vcc""")
    pree = []
    for t in range(2):
        P.act = f"en{t}"
        p1, p2, sm, o = T(4), T(4), T(4), T(6)
        P(f"ds_read_b128 {p1}, {recs[t]}")
        P(f"ds_read_b128 {p2}, {recs[t]} offset:16")
        P(f"ds_read_b64 {o}[0:1], {recs[t]} offset:{E_V}")
        P(f"ds_read_b128 {o}[2:5], {recs[t]} offset:{E_V + 8}")
        P(f"{M32} {sm}, %ONES, {p1}, 0", chain=f"es{t}")
        P(f"{M32} {sm}, %ONES, {p2}, {sm}", chain=f"es{t}")
        P(f"v_rcp_f32 {sm}[0], {sm}[0]")
        lo, hi = T(4), T(2)
        for k in range(6):
            x = T()
            P.many(f"""
            v_lshlrev_b32 {x}, 16, {o}[{k}]
            v_and_b32 {o}[{k}], 0xffff0000, {o}[{k}]
            v_mul_f32 {x}, {x}, {sm}[0]
            v_mul_f32 {o}[{k}], {o}[{k}], {sm}[0]
            v_cvt_pk_bf16_f32 {f'{lo}[{k}]' if k < 4 else f'{hi}[{k - 4}]'}, {x}, {o}[{k}]""")
        pree += tile_write(P, lo, hi, t, f"wE{t}", wm, "%aWe", pub=["te"])

    def ln_reduce(tag, off, nt, bar):
        P.act = "r" + tag
        r = [T(4), T(4)]
        rn = [P(f"ds_read_b128 {r[k]}, %aNr offset:{off + 1024 * k}", deps=[(bar, 0)], pub=["lr" + tag], look=99) for k in range(2)]
        d = T(4)
        P(f"{M32} {d}, %SEL, {r[0]}, 0", chain="LN" + tag)
        P(f"{M32} {d}, %SEL, {r[1]}, {d}", chain="LN" + tag)
        for t in range(nt):
            P(f"v_rsq_f32 {d}[{t}], {d}[{t}]")
            P(f"v_mul_f32 {d}[{t}], s{S_SQ}, {d}[{t}]")
        return d, rn

    def final(y, d, t, ad, tok):
        P.act = f"f{y}{t}"
        lo, hi = T(4), T(2)
        scale_pack(P, f"{y}{t}0", f"{d}[{t}]", lo, 0)
        scale_pack(P, f"{y}{t}1", f"{d}[{t}]", lo, 2)
        scale_pack(P, f"{y}{t}2", f"{d}[{t}]", hi, 0)
        return tile_write(P, lo, hi, t, f"w{y}{t}", wm, ad, pub=[tok])

    def proj(y, fr, t, ad, tok, bar):
        P.act = f"p{y}{t}"
        rn = frag_reads(P, fr, t, ad, deps=[(bar, 0)], pub=[tok])
        for j in range(3):
            chain(P, f"{y}{t}{j}", WO, j, fr, t)
        P.act = f"q{y}{t}"
        for j in range(3):
            sumsq(P, f"ss{y}{t}", f"{y}{t}{j}", j == 0, S_EPSL)
        return rn

    def out(tag, al, so, bar, offs=tuple(f"%g{j}" for j in range(5))):
        P.act = "o" + tag
        for j, g in enumerate(offs):
            z = T(4)
            P(f"ds_read_b128 {z}, {al} offset:{1024 * j}", deps=[(bar, 0)], look=99)
            P(f"buffer_store_dwordx4 {z}, {g}, s[{S_OUT}:{S_OUT + 3}], {so} offen {opt.get('stflag', 'sc1')}", look=99,
              w=0.66 if tag == "e" else 0.5 if j == 4 else 1)

    merge = opt.get("tmerge", TMERGE)
    pend = {}

    def bar(name, tok, pre):
        tgt = merge.get(name, name)
        t, p = pend.setdefault(tgt, ([], []))
        t.append(tok)
        p.extend(pre)
        if tgt == name:
            P.act = name
            P("s_barrier", name=name, need=t, deps=[(n, 0) for n in p])
        return tgt

    T1 = bar("T1", "b1", wr("lo"))
    Ta = bar("Ta", "ta", wr("l1") + (["T1"] if T1 == "T1" else []))
    Te = bar("Te", "te", pree)
    preb = []
    for t in range(3):
        preb += proj("YB", "FB", t, "%aFo", "tb", T1)
    da, rn = ln_reduce("a", 0, 3, Ta)
    prey = []
    for t in range(3):
        prey += final("Y", da, t, "%aWy", "ty")
    P.act = "lb"
    lp = T(2)
    P(f"v_cvt_pk_bf16_f32 {lp}[0], %ssYB0, %ssYB1")
    P(f"v_cvt_pk_bf16_f32 {lp}[1], %ssYB2, %ssYB2")
    preb.append(P(f"ds_write_b64 %aNw, {lp} offset:2048", pub=["tb"]))
    prec = []
    for t in range(2):
        prec += proj("YE", "FE", t, "%aF", "tc", Te)
    P.act = "le"
    lp = T(2)
    P(f"v_cvt_pk_bf16_f32 {lp}[0], %ssYE0, %ssYE1")
    if safe:
        P(f"v_mov_b32 {lp}[1], 0")
    else:
        P.many(f"""
        v_and_b32 %GD, 0xb8000000, %GD
        v_mov_b32 {lp}[1], 0x3f803f80
        v_cmp_ne_u32 vcc, 0, %GD
        v_cndmask_b32 {lp}[1], 0, {lp}[1], vcc""")
    prec.append(P(f"ds_write_b64 %aNw, {lp} offset:4096", pub=["tc"]))
    Ty = bar("Ty", "ty", prey)
    Tb = bar("Tb", "tb", preb)
    db, rn = ln_reduce("b", 2048, 3, Tb)
    prez = []
    for t in range(3):
        prez += final("YB", db, t, "%aW", "tz")
    Tc = bar("Tc", "tc", prec)
    Tz = bar("Tz", "tz", prez)
    out("a", "%aL2", f"s{S_SO + 3}", Ty)
    de, rn = ln_reduce("e", 4096, 2, Tc)
    prew = []
    for t in range(2):
        prew += final("YE", de, t, "%aWe", "tw")
    Tw = bar("Tw", "tw", prew)
    out("b", "%aL1", f"s{S_SO + 2}", Tz)
    out("e", "%aL0", "0", Tw, [f"{EO}[{j}]" for j in range(3)])
    if not safe:
        P(f"v_cmp_neq_f32 vcc, 0, {de}[2]", name="guard", deps=[(o.name, 0) for o in P.ops if ("vcc", 0) in o.dset])
    return P


def finite(P, fixed, liveout, prio=None, **sp):
    if prio:
        P.ops = reorder(P.ops, prio.split())
    sch = schedule(P.ops, 1, **sp)
    P.times = {x.op.name: x.t for x in sch}
    if VERB:
        step, row = 400, {}
        for x in sch:
            r = row.setdefault(x.t // step, dict(n={}, ev=[]))
            k = "idle" if x.li < 0 else x.op.kind
            r["n"][k] = r["n"].get(k, 0) + 1
            if x.op.kind == "barrier" or x.op.mn == "macro" or (x.op.kind == "mfma" and x.op.name.split("@")[0].endswith(("000", "100", "200", "0a"))) or x.op.name.endswith("_2"):
                r["ev"].append(x.op.name)
        for k in sorted(row):
            print(k * step, " ".join(f"{a}:{b}" for a, b in sorted(row[k]["n"].items())), "|", " ".join(row[k]["ev"]), file=sys.stderr)
    ops = [x.op for x in sch]
    n = len(ops)
    pre = {}
    for r in range(224, 256):
        first = next((k for k, o in enumerate(ops) if ("v", r) in o.dset | o.uset), 0)
        first = first if ("v", r) in ops[first].dset else 0
        pre[r] = ((1 << n) - 1) >> first << first
    al, pr = allocate(ops, P.vs, POOL + list(range(224, 256)), False, fixed=fixed, liveout=liveout, preocc=pre)
    assert check_dataflow(sch, al) == 0
    return [o.clone_with_text(substitute(o.text, al, P.vs)) for o in ops], sch[-1].t, pr


def variant(tag, safe, opt):
    L = loop_program(safe, opt)
    sp = dict(look_m=40, look_d=18, look_v=80)
    sp.update(opt.get("sched", {}))
    if safe:
        sp = dict(look_m=20, look_d=14, look_v=60)
    lprio = None if safe else opt.get("lprio", LPRIO)
    if opt.get("retl"):
        return L, sp
    sch = schedule(reorder(L.ops, lprio.split(), "grp") if lprio else L.ops, 7, **sp)
    body, cyc, same = extract_period(sch, L.anchor, 3)
    assert same, "schedule is not periodic"
    body = body[1:] + [(body[0][0], body[0][1] - 1)]
    ops = [o for o, s in body]
    al, pr = allocate(ops, L.vs, POOL, True, persistent=PERSIST, fixed=TOP)
    at = lambda i: next(k for k, x in enumerate(sch) if x.op.name == L.anchor and x.it == i)
    assert check_dataflow(sch[at(3):at(5)], al) == check_dataflow(sch[at(3):at(4)], al), "dataflow check failed"
    assert all(s in (-1, 0, 1) for o, s in body)
    loop = [o.clone_with_text(substitute(o.text, al, L.vs)) for o in ops]
    sccw = [k for k, o in enumerate(loop) if ("scc", 0) in o.dset or ("scc", 0) in o.uset]
    assert ("scc", 0) not in loop[sccw[0]].uset
    free = [k for k in range(sccw[-1] + 1, len(loop)) if loop[k].name == "_nop" and loop[k - 1].kind == "mfma"]
    loop[free[0]] = Ins(f"s_cmp_lg_u32 s{S_R + 1}, -1")
    if loop[0].name == "_nop":
        loop.pop(0)
    loop.append(Ins(f"s_cbranch_scc1 L_loop{tag}"))
    lin = live_in(ops)
    fixed = {n: al[n] for n in {r[0][1:] for r in lin}}
    H = head_program(L, body, safe, opt)
    hdef = {r for o in H.ops for r in o.defs}
    if opt.get("ret"):
        return H, tail_program(L, body, safe, opt), fixed, [r for r in lin if r in hdef]
    hp = dict(HSCHED)
    hp.update(opt.get("hsched", {}))
    head, hc, hpr = finite(H, fixed, [r for r in lin if r in hdef], None if safe else opt.get("hprio", HPRIO), **hp)
    if isinstance(opt.get("pst"), list):
        print("model times", [(m, H.times[m]) for m in opt["pst"]], file=sys.stderr)
    Tl = tail_program(L, body, safe, opt)
    tp = dict(TSCHED)
    tp.update(opt.get("tsched", {}))
    tail, tc, tpr = finite(Tl, fixed, [], opt.get("tprio", TPRIO), **tp)
    print(f"[{tag}] period {cyc}, pressure {pr}; head {hc} ({hpr}), tail {tc} ({tpr})", file=sys.stderr)
    head.append(Ins("s_waitcnt lgkmcnt(0)"))
    stag = opt.get("stag") if not safe else None
    loops = {}
    for w, sh in enumerate(stag or [0]):
        lp = [o.clone_with_text(o.text.replace("@W", str(w))) for o in loop]
        lp[-1] = Ins(f"s_cbranch_scc1 L_loop{tag}{w}")
        for bar in [o for o in lp if o.kind == "barrier"]:
            i = lp.index(bar)
            j = ([i - 1] + [k for k in range(i, len(lp)) if lp[k].kind == "mfma"])[sh] + 1
            assert not any(n == bar.name for o in lp[i + 1:j] for n, d in o.deps), bar.name
            if j != i:
                lp[i] = Ins("s_nop 0", name="_nop")
                if lp[j].name == "_nop":
                    lp[j] = bar
                else:
                    lp.insert(j, bar)
        loops[f"l{w}"] = lp
    paths = [[l] * 3 for l in loops] + [["h"] + [l] * n + ["t"] for l in loops for n in (1, 2, 3)]
    blocks = insert_waits(dict(h=head, t=tail, **loops), paths)
    loops = [prune_nops(blocks[l], True) for l in loops]
    head = fix_hazards(prune_nops(blocks["h"], False))
    tail = prune_nops(blocks["t"], False, loops[0][-12:])
    for lp in loops:
        assert not check_hazards(lp * 2)
        while check_hazards(head[-12:] + lp[:12]):
            head.append(Ins("s_nop 0"))
        tail = fix_hazards(tail, lp[-12:])
    print(f"[{tag}] loop {len(loops[0])} instrs est {[estimate_cycles(lp * 2) - estimate_cycles(lp) for lp in loops]}; head {len(head)} est {estimate_cycles(head)}; "
          f"tail {len(tail)} est {estimate_cycles(tail)}", file=sys.stderr)
    return head, loops, tail


def dump_code(opt):
    s = f"""    s_waitcnt vmcnt(0) lgkmcnt(0)
    s_nop 15
    s_barrier
    s_cmp_lg_u32 s2, {opt.get('dumpwg', 0)}
    s_cbranch_scc1 L_end
    s_load_dwordx2 s[94:95], s[0:1], 88
    v_mbcnt_lo_u32_b32 v0, -1, 0
    v_mbcnt_hi_u32_b32 v0, -1, v0
    v_lshlrev_b32 v0, 2, v0
    s_lshl_b32 s75, s{S_H}, 17
    v_add_u32 v0, s75, v0
    s_waitcnt lgkmcnt(0)
"""
    for f in "va":
        for r in range(256):
            s += f"    global_store_dword v0, {f}{r}, s[94:95] offset:{256 * (r % 8)}\n"
            if r % 8 == 7:
                s += "    v_add_u32 v0, 2048, v0\n    s_waitcnt vmcnt(8)\n"
    s += f"""    s_waitcnt vmcnt(0)
    v_mbcnt_lo_u32_b32 v0, -1, 0
    v_mbcnt_hi_u32_b32 v0, -1, v0
    v_lshlrev_b32 v0, 4, v0
    s_lshl_b32 s75, s{S_H}, 10
    v_add_u32 v0, s75, v0
    v_add_u32 v1, 0x80000, v0
"""
    for k in range(40):
        s += "    ds_read_b128 v[4:7], v0\n    s_waitcnt lgkmcnt(0)\n    global_store_dwordx4 v1, v[4:7], s[94:95]\n    v_add_u32 v0, 4096, v0\n    v_add_u32 v1, 4096, v1\n    s_waitcnt vmcnt(0)\n"
    return s + "    s_endpgm\n"


STAMP_REGS = [36, 3, 75, 6, 8, 10, 12, 14, 16, 18]


def build(opt):
    if opt.get("pst") or opt.get("tl"):
        POOL.remove(122)
    hF, lF, tF = variant("F", False, opt)
    hS, lS, tS = variant("S", True, opt) if not opt.get("noslow") else ([], [[]], [])

    outl = []

    def txt(seq):
        r = ""
        for o in seq:
            a, _, b = o.text.partition(";!OUT\n")
            outl.append(b + "\n" if b else "")
            r += (a if o.kind == "label" else "    " + a).rstrip() + "\n"
        return r

    diag = opt.get("stamp") or opt.get("seg") or opt.get("pst") or opt.get("nb") or opt.get("tl")
    pairs = []

    def stamp(kind="s_memrealtime"):
        r = [16, 18, 20, 22, 32, 34, 76, 78, 80, 82, 96, 98, 98, 98, 98, 98][len(pairs)]
        pairs.append(r)
        return Ins(f"{kind} s[{r}:{r + 1}]")

    pre = ""
    if opt.get("stamp"):
        pre = "    s_memrealtime s[36:37]\n"
        pre += "    s_memtime s[40:41]\n"
        hF += [stamp(), stamp("s_memtime")]
        tF = [stamp(), stamp("s_memtime")] + tF + [Ins("s_waitcnt vmcnt(0)"), stamp(), stamp("s_memtime")]
        pairs.append(40)
        pairs.append(S_IT)
    if opt.get("seg"):
        st = [stamp("s_memtime") for _ in range(15)]
        a, b = opt["seg"]
        for lp in lF:
            ms = [k for k, o in enumerate(lp) if o.kind == "mfma"]
            pos = [ms[min(a + (b - a) * i // 14, len(ms) - 2)] for i in range(15)]
            print("seg est:", [estimate_cycles(lp[:pos[i + 1] + 1]) - estimate_cycles(lp[:pos[i] + 1]) for i in range(14)], "pos", pos, file=sys.stderr)
            open("loop.txt", "w").write("".join(f"{k}: {o.text}\n" for k, o in enumerate(lp)))
            for i in reversed(range(15)):
                k = pos[i] + 1
                while lp[k].kind in ("wait", "barrier"):
                    k += 1
                lp.insert(k, st[i])
    if opt.get("tl"):
        pre = "    s_memrealtime s[36:37]\n"
        lp = lF[0]
        k = next(i for i, o in enumerate(lp) if o.kind == "barrier")
        tm = "s_memtime" if opt["tl"] == "c" else "s_memrealtime"
        lp[k:k] = [Ins(f"s_mov_b32 m0, s{S_IT}"), Ins("v_writelane_b32 v122, s16, m0")]
        lp[20:20] = [Ins(f"{tm} s[16:17]")]
    if opt.get("nb"):
        blk = hF if opt["nb"][0] == "h" else tF
        a, b = opt["nb"][1:]
        pre = "    s_memtime s[36:37]\n"
        idx = [a + (min(b, len(blk)) - a) * i // 7 for i in range(8)]
        print("nb", [(k, estimate_cycles(blk[:k])) for k in idx], file=sys.stderr)
        open(f"tmp/{opt['nb'][0]}.txt", "w").write("".join(f"{k}: {o.text.splitlines()[0][:110]}\n" for k, o in enumerate(blk)))
        st = [stamp("s_memtime") for _ in range(8)]
        for i in reversed(range(8)):
            k = idx[i]
            while k < len(blk) and blk[k].kind == "wait":
                k += 1
            blk.insert(k, st[i])
    if opt.get("pst"):
        tm = "s_memtime" if opt.get("cyc") else "s_memrealtime"
        pre = f"    {tm} s[36:37]\n"
        marks = opt["pst"]
        if isinstance(marks, tuple):
            idx = [marks[0] + (min(marks[1], len(hF) - 1) - marks[0]) * i // 14 for i in range(15)]
            for i in idx:
                hF[i].name = f"mark{i}"
            marks = [f"mark{i}" for i in idx]
        print("issue est at marks", [(o.name, estimate_cycles(hF[:k + 1])) for k, o in enumerate(hF) if o.name in marks], file=sys.stderr)
        open("head.txt", "w").write("".join(f"{k}: {o.text.splitlines()[0][:110]}\n" for k, o in enumerate(hF)))
        out = []
        for k, o in enumerate(hF):
            out.append(o)
            if o.name in marks:
                out += [Ins(f"{tm} s[38:39]"), Ins("s_waitcnt lgkmcnt(0)"), Ins(f"v_writelane_b32 v122, s38, {marks.index(o.name)}"), Ins(f"s_mov_b32 s39, 0x00010001")]
        hF = out
    ref = open("standalone__window_attn_swin_v2__vision.s.ref").read().split("\n")
    head = [l for l in ref if l.startswith(";") and "@launch" not in l]
    s = "\n".join(head) + f"\n; @launch grid=(256,1,1) block=(256,1,1) lds={LDS_TOTAL}\n"
    s += f""".amdgcn_target "amdgcn-amd-amdhsa--gfx950"
.text
.globl {KNAME}
.p2align 8
.type {KNAME},@function
{KNAME}:
{pre}    v_lshrrev_b32 v0, 6, v0
    s_cmp_ge_u32 s2, 256
    s_cbranch_scc1 L_end
    v_readfirstlane_b32 s{S_H}, v0
    s_mov_b32 s{S_MSK}, 0
    s_nop 0
"""
    s += txt(hF) + (dump_code(opt) if opt.get("dump") == 0 else "")
    for w in range(1, len(lF)):
        s += f"    s_cmp_eq_u32 s{S_H}, {w}\n    s_cbranch_scc1 L_loopF{w}\n"
    for w, lp in enumerate(lF):
        s += f".p2align 6\nL_loopF{w}:\n" + txt(lp) + ("    s_branch L_tailF\n" if w + 1 < len(lF) else "")
    s += "L_tailF:\n" + (dump_code(opt) if opt.get("dump") == 1 else "") + txt(tF)
    if diag:
        s += "    s_load_dwordx2 s[100:101], s[0:1], 88\n    s_waitcnt lgkmcnt(0)\n    v_mov_b32 v4, s36\n"
        s += "".join(f"    v_mov_b32 v{5 + i}, s{r}\n" for i, r in enumerate(pairs))
        s += f"    s_lshl_b32 s75, s2, 2\n    s_add_u32 s75, s75, s{S_H}\n    s_lshl_b32 s75, s75, 6\n    v_mov_b32 v2, s75\n"
        s += "".join(f"    global_store_dwordx4 v2, v[{4 + 4 * i}:{7 + 4 * i}], s[100:101] offset:{16 * i}\n" for i in range(4))
        if opt.get("pst"):
            s += "    v_mbcnt_lo_u32_b32 v3, -1, 0\n    v_mbcnt_hi_u32_b32 v3, -1, v3\n    v_lshl_add_u32 v2, v3, 2, v2\n    s_mov_b64 exec, 0x7fff\n    s_waitcnt vmcnt(0)\n    global_store_dword v2, v122, s[100:101] offset:4\n    s_mov_b64 exec, -1\n"
        if opt.get("tl"):
            s += "    v_mbcnt_lo_u32_b32 v3, -1, 0\n    v_mbcnt_hi_u32_b32 v3, -1, v3\n    v_lshlrev_b32 v2, 2, v2\n    v_lshl_add_u32 v2, v3, 2, v2\n    v_add_u32 v2, 0x100000, v2\n    global_store_dword v2, v122, s[100:101]\n"
    s += "    s_nop 4\n    s_cbranch_vccnz L_slow\nL_end:\n    s_endpgm\n"
    s += "L_slow:\n    s_waitcnt vmcnt(0) lgkmcnt(0)\n    s_nop 15\n    s_barrier\n" + f"    s_lshr_b32 s{S_REP}, s{S_MSK}, 20\n"
    s += txt(hS) + ".p2align 6\nL_loopS0:\n" + txt(lS[0]) + txt(tS) + "    s_endpgm\n"
    s += "".join(outl)
    s += f""".section .rodata,"a"
.p2align 6
.amdhsa_kernel {KNAME}
  .amdhsa_next_free_vgpr 512
  .amdhsa_next_free_sgpr 102
  .amdhsa_accum_offset 256
  .amdhsa_group_segment_fixed_size 0
  .amdhsa_kernarg_size 96
  .amdhsa_user_sgpr_count 2
  .amdhsa_user_sgpr_kernarg_segment_ptr 1
  .amdhsa_system_sgpr_workgroup_id_x 1
.end_amdhsa_kernel
"""
    return s


if __name__ == "__main__":
    out = sys.argv[1] if len(sys.argv) > 1 else "standalone__window_attn_swin_v2__vision.s"
    opt = {}
    for a in sys.argv[2:]:
        k, _, v = a.partition("=")
        opt[k] = eval(v) if v else True
    open(out, "w").write(build(opt))
```
